```python
import torch

def _softmax(x, axis=-1):
    return torch.softmax(x, dim=axis)
def _gelu(x):
    return torch.nn.functional.gelu(x, approximate="tanh")
def _silu(x):
    return torch.nn.functional.silu(x)
def _sigmoid(x):
    return torch.sigmoid(x)
def _layernorm(x, axis=-1, eps=1e-5):
    m = x.mean(dim=axis, keepdim=True)
    v = x.var(dim=axis, keepdim=True, unbiased=False)
    return (x - m) / torch.sqrt(v + eps)
def _scatter_add(tgt, idx, src, axis=0):
    return tgt.clone().index_add_(axis, idx, src)
def _segment_sum(src, seg, n):
    out = torch.zeros((n,) + src.shape[1:], dtype=src.dtype)
    return out.index_add_(0, seg, src)
def _pad(x, pw):
    flat = tuple(v for pair in reversed(pw) for v in pair)
    return torch.nn.functional.pad(x, flat)

kernel_name = 'gated_mix__ssm_conv_h3__sliding_block__prompt'

def setup_inputs():

    _w = (lambda a: (lambda t: t.to(torch.bfloat16) if t.is_floating_point() else t)(torch.as_tensor(a)))
    def _A_setup():
        B, S, D = 1, 2048, 512
        ks = 4
        return {
            "q": _w((lambda *s: torch.randn(*s, dtype=torch.bfloat16) * 0.05)(B, S, D)),
            "k": _w((lambda *s: torch.randn(*s, dtype=torch.bfloat16) * 0.8)(B, S, D)),
            "v": _w((lambda *s: torch.randn(*s, dtype=torch.bfloat16) * 0.8)(B, S, D)),
            "shift_k": _w((lambda *s: torch.randn(*s, dtype=torch.bfloat16) * 0.8)(D, ks) * 0.5),
            "ssm_k": _w((lambda *s: torch.randn(*s, dtype=torch.bfloat16) * 1.6)(D, S) * (1.0 / S ** 0.5)),
            "ssm_D": _w((lambda *s: torch.randn(*s, dtype=torch.bfloat16) * 0.8)(D)),
        }
    _A_in = _A_setup()

    def _B_setup():
        B, S, D = 1, 2048, 512
        return {
            "x": _w((lambda *s: torch.randn(*s, dtype=torch.bfloat16) * 0.05)(B, S, D)),
            "wqkv": _w((lambda *s: torch.randn(*s, dtype=torch.bfloat16) * 0.8)(D, 3 * D)),
            "wo": _w((lambda *s: torch.randn(*s, dtype=torch.bfloat16) * 0.05)(D, D)),
        }
    _B_in = _B_setup()

    return {
        "A_q": _A_in["q"],
        "A_k": _A_in["k"],
        "A_v": _A_in["v"],
        "A_shift_k": _A_in["shift_k"],
        "A_ssm_k": _A_in["ssm_k"],
        "A_ssm_D": _A_in["ssm_D"],
        "B_x": _B_in["x"],
        "B_wqkv": _B_in["wqkv"],
        "B_wo": _B_in["wo"],
        "gate_w": _w((lambda *s: torch.randn(*s, dtype=torch.bfloat16) * 0.05)(512) * 16.0),
    }

def reference(A_q, A_k, A_v, A_shift_k, A_ssm_k, A_ssm_D, B_x, B_wqkv, B_wo, gate_w):
    def _A_ref(q, k, v, shift_k, ssm_k, ssm_D):
        B, S, D = q.shape
        ks = shift_k.shape[-1]
        k_pad = _pad(k, ((0, 0), (ks - 1, 0), (0, 0)))
        k_shift = torch.zeros_like(k)
        for t in range(ks):
            k_shift = k_shift + k_pad[:, t:t + S, :] * shift_k[:, ks - 1 - t][None, None, :]
        kv = k_shift * v
        L = 2 * S
        kv_pad = _pad(kv, ((0, 0), (0, S), (0, 0)))
        kf_pad = _pad(ssm_k, ((0, 0), (0, S)))
        kv_f = (lambda x, axes=(-2,-1): torch.fft.rfft2(x.float(), dim=axes))(kv_pad[:, None, :, :], axes=(1, 2))
        kf_f = (lambda x, axes=(-2,-1): torch.fft.rfft2(x.float(), dim=axes))(kf_pad[:, None, :], axes=(1, 2))
        kf_f = (lambda x, *d: x.permute(*d))(kf_f, 1, 2, 0)
        y_f = kv_f * kf_f[None, :, :, :]
        y = (lambda x, s, axes=(-2,-1): torch.fft.irfft2(x, s=s, dim=axes).to(torch.bfloat16))(y_f, (1, L), axes=(1, 2))[:, 0, :S, :]
        y = y + kv * ssm_D[None, None, :]
        return q * y

    def _B_ref(x, wqkv, wo):
        B, S, D = x.shape
        H = 32; Dh = D // H; W = 256
        qkv = (lambda x, *d: x.permute(*d))((x @ wqkv).reshape(B, S, 3, H, Dh), 2, 0, 3, 1, 4)
        q, k, v = qkv[0], qkv[1], qkv[2]
        scores = torch.einsum("bhqd,bhkd->bhqk", q, k) * (Dh ** -0.5)
        idx = torch.arange(S)
        mask = (idx[:, None] - idx[None, :] >= 0) & (idx[:, None] - idx[None, :] < W)
        scores = torch.where(mask[None, None], scores, -1e9)
        p = _softmax(scores, axis=-1)
        o = torch.einsum("bhqk,bhkd->bhqd", p, v)
        return (lambda x, *d: x.permute(*d))(o, 0, 2, 1, 3).reshape(B, S, D) @ wo

    x = A_q
    g = _sigmoid((x * gate_w).sum(-1, keepdims=True))
    a = _A_ref(x, A_k, A_v, A_shift_k, A_ssm_k, A_ssm_D)
    b = _B_ref(x, B_wqkv, B_wo)
    return g * a + (1 - g) * b
```

```python
WS_Q, WS_K, WS_VT, WS_YT, WS_WOT = 0, 2<<20, 4<<20, 6<<20, 8<<20
OSTR = 1040
OOFF = 0
GOFF = 32*OSTR
YOFF = GOFF + 256
K2_LDS = YOFF + 512*64
def k2(L):
    def e(s): L.append("    " + s)
    def lab(s): L.append(s + ":")
    def vr(a, n): return f"v[{a}:{a+n-1}]"
    def srd(d, b, nbytes):
        e(f"s_mov_b32 s{d}, s{b}"); e(f"s_and_b32 s{d+1}, s{b+1}, 0xffff")
        e(f"s_mov_b32 s{d+2}, {nbytes}"); e(f"s_mov_b32 s{d+3}, 0x00020000")
    def rb(dst, src):
        e(f"v_cvt_pk_bf16_f32 {dst}, {src}, {src}")
        e(f"v_lshlrev_b32 {dst}, 16, {dst}")
    lab("k2_kernel")
    e("s_cmp_ge_u32 s2, 64")
    e("s_cbranch_scc1 K2_END")
    e("s_load_dwordx2 s[4:5], s[0:1], 0")
    e("s_load_dwordx4 s[8:11], s[0:1], 72")
    e("s_load_dwordx2 s[12:13], s[0:1], 96")
    e("v_and_b32 v1, 63, v0")
    e("v_lshrrev_b32 v2, 6, v0")
    e("s_lshl_b32 s3, s2, 5")
    e("s_waitcnt lgkmcnt(0)")
    srd(16, 4, 2048*512*2)
    srd(20, 8, 1024)
    srd(24, 10, 2048*512*2)
    srd(28, 12, 0x10000000)
    e("v_readfirstlane_b32 s32, v2")
    e("v_lshrrev_b32 v3, 2, v0")
    e("v_and_b32 v4, 3, v0")
    e("v_lshlrev_b32 v5, 12, v3")
    e("v_lshl_add_u32 v5, v4, 4, v5")
    e("s_lshl_b32 s33, s3, 1")
    e(f"s_add_u32 s33, s33, {WS_YT}")
    for i in range(4):
        e(f"s_add_u32 s34, s33, {i*128*4096}")
        e(f"buffer_load_dwordx4 {vr(64+4*i,4)}, v5, s[28:31], s34 offen")
    e("v_lshrrev_b32 v6, 4, v0")
    e("v_and_b32 v7, 15, v0")
    e("v_add_u32 v8, s3, v6")
    e("v_lshlrev_b32 v8, 10, v8")
    e("v_lshl_add_u32 v8, v7, 6, v8")
    e("v_lshlrev_b32 v9, 6, v7")
    for i in range(4):
        e(f"buffer_load_dwordx4 {vr(80+4*i,4)}, v8, s[16:19], 0 offen offset:{16*i}")
        e(f"buffer_load_dwordx4 {vr(96+4*i,4)}, v9, s[20:23], 0 offen offset:{16*i}")
    e("v_lshlrev_b32 v10, 6, v3")
    e("v_lshl_add_u32 v10, v4, 4, v10")
    e("s_waitcnt vmcnt(8)")
    for i in range(4):
        e(f"ds_write_b128 v10, {vr(64+4*i,4)} offset:{YOFF+i*128*64}")
    e("s_waitcnt vmcnt(0)")
    e("v_mov_b32 v11, 0")
    for i in range(16):
        e(f"v_lshlrev_b32 v12, 16, v{80+i}"); e(f"v_lshlrev_b32 v13, 16, v{96+i}")
        e("v_mul_f32 v12, v12, v13"); rb("v12","v12"); e("v_add_f32 v11, v11, v12")
        e(f"v_and_b32 v12, 0xffff0000, v{80+i}"); e(f"v_and_b32 v13, 0xffff0000, v{96+i}")
        e("v_mul_f32 v12, v12, v13"); rb("v12","v12"); e("v_add_f32 v11, v11, v12")
    for x in (1,2,4,8):
        e(f"ds_swizzle_b32 v12, v11 offset:{(x<<10)|0x1f}")
        e("s_waitcnt lgkmcnt(0)")
        e("v_add_f32 v11, v11, v12")
    rb("v11","v11")
    e("v_mul_f32 v11, 0xbfb8aa3b, v11")
    e("v_exp_f32 v11, v11")
    e("s_nop 0")
    e("v_add_f32 v11, 1.0, v11")
    e("v_rcp_f32 v11, v11")
    e("s_nop 0")
    rb("v11","v11")
    e("v_lshlrev_b32 v12, 2, v6")
    e(f"ds_write_b32 v12, v11 offset:{GOFF}")
    e("v_and_b32 v8, 31, v1")
    e("v_lshrrev_b32 v9, 5, v1")
    e("v_xor_b32 v10, 32, v1")
    e("v_lshlrev_b32 v10, 2, v10")
    e("s_sub_u32 s35, 8, s2")
    e("s_max_i32 s35, s35, 0")
    e("s_lshl_b32 s36, s32, 2")
    e("s_add_u32 s37, s36, 4")
    lab("K2_HEAD")
    e("s_lshl_b32 s38, s36, 5")
    e("v_add_u32 v11, s3, v8")
    e("v_lshlrev_b32 v11, 10, v11")
    e("v_lshl_add_u32 v11, v9, 4, v11")
    e("v_add_u32 v11, s38, v11")
    e("buffer_load_dwordx4 v[16:19], v11, s[28:31], 0 offen")
    e(f"v_add_u32 v12, {WS_K - 256*1024}, v11")
    e("v_and_b32 v13, 15, v1")
    e("s_lshl_b32 s39, s36, 4")
    e("v_add_u32 v13, s39, v13")
    e("v_lshlrev_b32 v13, 12, v13")
    e("v_lshl_add_u32 v13, v9, 3, v13")
    e("s_lshl_b32 s39, s3, 1")
    e(f"s_add_u32 s39, s39, {WS_VT - 512}")
    e("v_add_u32 v13, s39, v13")
    for t in range(9):
        e(f"s_cmp_lt_i32 s35, {t+1}")
        e(f"s_cbranch_scc0 K2_SK{t}")
        e(f"s_mov_b32 s40, {t*32*1024}")
        e(f"buffer_load_dwordx4 v[20:23], v12, s[28:31], s40 offen")
        for i in range(16): e(f"v_mov_b32 v{64+16*t+i}, 0")
        e("s_waitcnt vmcnt(0)"); e("s_nop 1")
        e(f"v_mfma_f32_32x32x16_bf16 {vr(64+16*t,16)}, v[20:23], v[16:19], {vr(64+16*t,16)}")
        e(f"s_branch K2_DN{t}")
        lab(f"K2_SK{t}")
        for i in range(16): e(f"v_mov_b32 v{64+16*t+i}, 0xf149f2ca")
        lab(f"K2_DN{t}")
    e("s_nop 7"); e("s_nop 7")
    e("v_lshlrev_b32 v14, 2, v9")
    for t in (0, 8):
        for j in range(4):
            for i in range(4):
                r = 64+16*t+4*j+i
                e(f"v_add_u32 v15, {8*j+i}, v14")
                if t == 0: e("v_cmp_gt_u32 vcc, v15, v8")
                else:      e("v_cmp_le_u32 vcc, v15, v8")
                e("v_mov_b32 v24, 0xf149f2ca")
                e(f"v_cndmask_b32 v{r}, v24, v{r}, vcc")
    for r in range(64, 208): rb(f"v{r}", f"v{r}")
    e("v_mov_b32 v24, v64")
    for r in range(65, 208, 2):
        e(f"v_max3_f32 v24, v24, v{r}, v{min(r+1,207)}")
    e("ds_bpermute_b32 v25, v10, v24")
    e("s_waitcnt lgkmcnt(0)")
    e("v_max_f32 v24, v24, v25")
    e("v_mov_b32 v26, 0x3eb8aa3b")
    e("v_mul_f32 v25, v26, v24")
    e("v_mov_b32 v27, 0")
    for r in range(64, 208):
        e(f"v_fma_f32 v{r}, v{r}, v26, -v25")
        e(f"v_exp_f32 v{r}, v{r}")
        e("s_nop 0")
        e(f"v_add_f32 v27, v27, v{r}")
    e("ds_bpermute_b32 v25, v10, v27")
    for r in range(64, 208, 2):
        e(f"v_cvt_pk_bf16_f32 v{64+(r-64)//2}, v{r}, v{r+1}")
    e("s_waitcnt lgkmcnt(0)")
    e("v_add_f32 v27, v27, v25")
    e("v_rcp_f32 v28, v27")
    for i in range(16): e(f"v_mov_b32 v{32+i}, 0")
    for t in range(9):
        e(f"s_cmp_lt_i32 s35, {t+1}")
        e(f"s_cbranch_scc0 K2_SV{t}")
        for cc in range(2):
            e(f"buffer_load_dwordx2 v[{20+4*cc}:{21+4*cc}], v13, s[28:31], 0 offen offset:{t*64+cc*32}")
            e(f"buffer_load_dwordx2 v[{22+4*cc}:{23+4*cc}], v13, s[28:31], 0 offen offset:{t*64+cc*32+16}")
        e("s_waitcnt vmcnt(0)")
        for cc in range(2):
            e(f"v_mfma_f32_32x32x16_bf16 v[32:47], {vr(20+4*cc,4)}, {vr(64+8*t+4*cc,4)}, v[32:47]")
        lab(f"K2_SV{t}")
    e("s_nop 7"); e("s_nop 7")
    for i in range(8): e(f"v_mul_f32 v{32+i}, v{32+i}, v28")
    for i in range(4): e(f"v_cvt_pk_bf16_f32 v{32+i}, v{32+2*i}, v{33+2*i}")
    e(f"v_mul_u32_u24 v15, {OSTR}, v8")
    e("v_lshl_add_u32 v15, v9, 3, v15")
    e("v_add_u32 v15, s38, v15")
    e("ds_write_b64 v15, v[32:33]")
    e("ds_write_b64 v15, v[34:35] offset:16")
    e("s_add_u32 s36, s36, 1")
    e("s_cmp_lt_u32 s36, s37")
    e("s_cbranch_scc1 K2_HEAD")
    e("s_waitcnt lgkmcnt(0)")
    e("s_barrier")
    e("s_lshl_b32 s36, s32, 6")
    e("v_add_u32 v11, s36, v8")
    e("v_lshlrev_b32 v11, 10, v11")
    e("v_lshl_add_u32 v11, v9, 4, v11")
    e(f"v_add_u32 v11, {WS_WOT}, v11")
    e(f"v_mul_u32_u24 v12, {OSTR}, v8")
    e("v_lshl_add_u32 v12, v9, 4, v12")
    for i in range(32): e(f"v_mov_b32 v{32+i}, 0")
    for kk in range(32):
        e(f"buffer_load_dwordx4 v[16:19], v11, s[28:31], 0 offen offset:{kk*32}")
        e(f"s_mov_b32 s40, {32*1024}")
        e(f"buffer_load_dwordx4 v[20:23], v11, s[28:31], s40 offen offset:{kk*32}")
        e(f"ds_read_b128 v[24:27], v12 offset:{kk*32}")
        e("s_waitcnt vmcnt(0) lgkmcnt(0)")
        e("v_mfma_f32_32x32x16_bf16 v[32:47], v[16:19], v[24:27], v[32:47]")
        e("v_mfma_f32_32x32x16_bf16 v[48:63], v[20:23], v[24:27], v[48:63]")
    e("s_nop 7"); e("s_nop 7")
    e("v_lshlrev_b32 v13, 2, v8")
    e(f"ds_read_b32 v14, v13 offset:{GOFF}")
    e("v_add_u32 v11, s3, v8")
    e("v_lshlrev_b32 v11, 10, v11")
    e("v_lshl_add_u32 v11, v9, 3, v11")
    e("s_lshl_b32 s38, s36, 1")
    e("v_add_u32 v11, s38, v11")
    e("v_lshlrev_b32 v12, 8, v9")
    e("v_lshl_add_u32 v12, v8, 1, v12")
    e("s_lshl_b32 s38, s36, 6")
    e("v_add_u32 v12, s38, v12")
    e("s_waitcnt lgkmcnt(0)")
    e("v_sub_f32 v15, 1.0, v14"); rb("v15","v15")
    for t in range(2):
        for j in range(4):
            o = t*32 + 8*j
            e(f"buffer_load_dwordx2 v[16:17], v11, s[16:19], 0 offen offset:{o*2}")
            for i in range(4):
                e(f"ds_read_u16 v{20+i}, v12 offset:{YOFF+(o+i)*64}")
            e("s_waitcnt vmcnt(0) lgkmcnt(0)")
            e("v_lshlrev_b32 v24, 16, v16"); e("v_and_b32 v25, 0xffff0000, v16")
            e("v_lshlrev_b32 v26, 16, v17"); e("v_and_b32 v27, 0xffff0000, v17")
            for i in range(4):
                e(f"v_lshlrev_b32 v{20+i}, 16, v{20+i}")
                e(f"v_mul_f32 v{20+i}, v{20+i}, v{24+i}"); rb(f"v{20+i}", f"v{20+i}")
                e(f"v_mul_f32 v{20+i}, v14, v{20+i}"); rb(f"v{20+i}", f"v{20+i}")
                rb(f"v{24+i}", f"v{32+16*t+4*j+i}")
                e(f"v_mul_f32 v{24+i}, v15, v{24+i}"); rb(f"v{24+i}", f"v{24+i}")
                e(f"v_add_f32 v{20+i}, v{20+i}, v{24+i}")
            e("v_cvt_pk_bf16_f32 v28, v20, v21")
            e("v_cvt_pk_bf16_f32 v29, v22, v23")
            e(f"buffer_store_dwordx2 v[28:29], v11, s[24:27], 0 offen offset:{o*2}")
            e("s_nop 1")
    lab("K2_END")
    e("s_endpgm")
```

```python
import sys
NAME = "gated_mix__ssm_conv_h3__sliding_block__prompt"
L = []
def e(s): L.append("    " + s)
def lab(s): L.append(s + ":")
def c(s): L.append("    ; " + s)

WS_Q, WS_K, WS_VT, WS_YT, WS_WOT = 0, 2<<20, 4<<20, 6<<20, 8<<20
SRD3 = "0x00020000"

def srd(d, b, nbytes):
    e(f"s_mov_b32 s{d}, s{b}")
    e(f"s_and_b32 s{d+1}, s{b+1}, 0xffff")
    e(f"s_mov_b32 s{d+2}, {nbytes}")
    e(f"s_mov_b32 s{d+3}, {SRD3}")

def vr(a, n): return f"v[{a}:{a+n-1}]"

N_CONV, N_GEMM, N_WOT = 256, 384, 128
K1_GRID = N_CONV + N_GEMM + N_WOT
WSTR = 144
CP_BYTES = 261*16
HC_BYTES = 8*CP_BYTES
XB_ZERO = 256*16
XB_BYTES = XB_ZERO + 256*16
CH_BYTES = HC_BYTES + XB_BYTES
HS_OFF = 2*CH_BYTES
HS_CH = (32+2048+32)*2
K1_LDS = max(512*WSTR, HS_OFF + 2*HS_CH)

def k1():
    lab(f"k1_kernel")
    e(f"s_cmp_ge_u32 s2, {K1_GRID}")
    e("s_cbranch_scc1 K1_END")
    e("s_load_dwordx4 s[4:7], s[0:1], 0")
    e("s_load_dwordx4 s[8:11], s[0:1], 16")
    e("s_load_dwordx4 s[12:15], s[0:1], 32")
    e("s_load_dwordx4 s[16:19], s[0:1], 56")
    e("s_load_dwordx2 s[20:21], s[0:1], 96")
    e("v_and_b32 v1, 63, v0")
    e("v_lshrrev_b32 v2, 6, v0")
    e("s_waitcnt lgkmcnt(0)")
    srd(24, 20, 0x10000000)
    e(f"s_cmp_lt_u32 s2, {N_CONV}")
    e("s_cbranch_scc1 K1_CONV")
    e(f"s_cmp_lt_u32 s2, {N_CONV+N_GEMM}")
    e("s_cbranch_scc1 K1_GEMM")
    srd(28, 18, 512*512*2)
    e(f"s_sub_u32 s3, s2, {N_CONV+N_GEMM}")
    e("s_lshl_b32 s3, s3, 8")
    e("v_add_u32 v3, s3, v0")
    e("v_and_b32 v4, 511, v3")
    e("v_lshrrev_b32 v5, 9, v3")
    e("v_lshlrev_b32 v6, 13, v5")
    e("v_lshl_add_u32 v6, v4, 1, v6")
    for i in range(8):
        e(f"s_mov_b32 s70, {i*1024}")
        e(f"buffer_load_ushort v{8+i}, v6, s[28:31], s70 offen")
    e("s_waitcnt vmcnt(0)")
    for i in range(4):
        e(f"v_lshlrev_b32 v{9+2*i}, 16, v{9+2*i}")
        e(f"v_or_b32 v{16+i}, v{8+2*i}, v{9+2*i}")
    e("v_lshlrev_b32 v6, 10, v4")
    e("v_lshl_add_u32 v6, v5, 4, v6")
    e(f"v_add_u32 v6, {WS_WOT}, v6")
    e("buffer_store_dwordx4 v[16:19], v6, s[24:27], 0 offen")
    e("s_endpgm")
    lab("K1_GEMM")
    srd(28, 4, 2048*512*2)
    srd(32, 16, 512*1536*2)
    e(f"s_sub_u32 s3, s2, {N_CONV}")
    e("s_mul_i32 s36, s3, 2731")
    e("s_lshr_b32 s36, s36, 16")
    e("s_mul_i32 s37, s36, 24")
    e("s_sub_u32 s37, s3, s37")
    e("s_lshl_b32 s38, s37, 7")
    e("v_lshrrev_b32 v3, 3, v0")
    e("v_and_b32 v4, 7, v0")
    e("v_mul_u32_u24 v5, 3072, v3")
    e("v_lshl_add_u32 v5, v4, 4, v5")
    e(f"v_mul_u32_u24 v6, {WSTR}, v3")
    e("v_lshl_add_u32 v6, v4, 4, v6")
    for i in range(16):
        e(f"s_mov_b32 s39, {i*32*3072}")
        e(f"s_add_u32 s39, s39, s38")
        e(f"buffer_load_dwordx4 {vr(64+4*i,4)}, v5, s[32:35], s39 offen")
    e("s_lshl_b32 s40, s36, 7")
    e("v_lshlrev_b32 v7, 5, v2")
    e("v_add_u32 v7, s40, v7")
    e("v_and_b32 v8, 31, v1")
    e("v_add_u32 v8, v7, v8")
    e("v_lshlrev_b32 v8, 10, v8")
    e("v_lshrrev_b32 v9, 5, v1")
    e("v_lshl_add_u32 v8, v9, 4, v8")
    for kk in range(32):
        e(f"buffer_load_dwordx4 {vr(128+4*kk,4)}, v8, s[28:31], 0 offen offset:{kk*32}")
    for i in range(16):
        e(f"s_waitcnt vmcnt({32+15-i})")
        if i == 8: e(f"v_add_u32 v6, {8*32*WSTR}, v6")
        e(f"ds_write_b128 v6, {vr(64+4*i,4)} offset:{(i%8)*32*WSTR}")
    e("v_lshrrev_b32 v10, 4, v1")
    e("v_and_b32 v11, 15, v1")
    e("v_lshrrev_b32 v12, 1, v10")
    e("v_lshlrev_b32 v12, 3, v12")
    e("v_lshrrev_b32 v13, 2, v11")
    e("v_add_u32 v12, v12, v13")
    e(f"v_mul_u32_u24 v12, {WSTR}, v12")
    e("v_and_b32 v13, 1, v10")
    e("v_lshlrev_b32 v13, 5, v13")
    e("v_and_b32 v14, 3, v11")
    e("v_lshl_add_u32 v13, v14, 3, v13")
    e("v_add_u32 v12, v12, v13")
    e(f"v_add_u32 v13, {16*16*WSTR}, v12")
    for i in range(32):
        e(f"v_mov_b32 v{16+i}, 0")
    e("s_waitcnt vmcnt(0) lgkmcnt(0)")
    e("s_barrier")
    e("s_cmp_ge_u32 s37, 16")
    e("s_cbranch_scc1 K1_GEMM_V")
    def gemm_loop(swap):
        for kk in range(32):
            base = 12 if kk < 16 else 13
            k2 = kk % 16
            for t in range(2):
                for rd in range(2):
                    e(f"ds_read_b64_tr_b16 {vr(64+8*t+2*rd,2)}, v{base} offset:{k2*16*WSTR+rd*4*WSTR+t*64}")
            e("s_waitcnt lgkmcnt(0)")
            for t in range(2):
                W = vr(64+8*t,4); X = vr(128+4*kk,4); D = vr(16+16*t,16)
                if swap: e(f"v_mfma_f32_32x32x16_bf16 {D}, {X}, {W}, {D}")
                else:    e(f"v_mfma_f32_32x32x16_bf16 {D}, {W}, {X}, {D}")
    gemm_loop(False)
    e("s_nop 7"); e("s_nop 7")
    e("s_lshr_b32 s41, s37, 3")
    e("s_lshl_b32 s41, s41, 21")
    e("s_and_b32 s42, s37, 7")
    e("s_lshl_b32 s42, s42, 7")
    e("s_add_u32 s41, s41, s42")
    e("v_and_b32 v8, 31, v1")
    e("v_add_u32 v8, v7, v8")
    e("v_lshlrev_b32 v8, 10, v8")
    e("v_lshl_add_u32 v8, v9, 3, v8")
    e("v_add_u32 v8, s41, v8")
    for t in range(2):
        for j in range(4):
            b = 16+16*t+4*j
            e(f"v_cvt_pk_bf16_f32 v{48+2*(j&1)}, v{b}, v{b+1}")
            e(f"v_cvt_pk_bf16_f32 v{49+2*(j&1)}, v{b+2}, v{b+3}")
            e(f"buffer_store_dwordx2 {vr(48+2*(j&1),2)}, v8, s[24:27], 0 offen offset:{t*64+j*16}")
    e("s_endpgm")
    lab("K1_GEMM_V")
    gemm_loop(True)
    e("s_nop 7"); e("s_nop 7")
    e("s_and_b32 s42, s37, 7")
    e("s_lshl_b32 s42, s42, 6")
    e("v_and_b32 v8, 31, v1")
    e("v_add_u32 v8, s42, v8")
    e("v_lshlrev_b32 v8, 12, v8")
    e("v_lshl_add_u32 v8, v7, 1, v8")
    e("v_lshl_add_u32 v8, v9, 3, v8")
    e(f"v_add_u32 v8, {WS_VT}, v8")
    for t in range(2):
        e(f"v_add_u32 v10, {t*32*4096}, v8")
        for j in range(4):
            b = 16+16*t+4*j
            e(f"v_cvt_pk_bf16_f32 v{48+2*(j&1)}, v{b}, v{b+1}")
            e(f"v_cvt_pk_bf16_f32 v{49+2*(j&1)}, v{b+2}, v{b+3}")
            e(f"buffer_store_dwordx2 {vr(48+2*(j&1),2)}, v10, s[24:27], 0 offen offset:{j*16}")
    e("s_endpgm")
    lab("K1_CONV")
    srd(28, 6, 2048*512*2)
    srd(32, 8, 2048*512*2)
    srd(36, 12, 512*2048*2)
    e("s_lshl_b32 s3, s2, 1")
    e("s_lshl_b32 s40, s3, 3")
    e("s_load_dwordx4 s[44:47], s[10:11], s40")
    e("s_lshl_b32 s41, s3, 1")
    e("s_load_dword s48, s[14:15], s41")
    e("v_lshlrev_b32 v3, 13, v0")
    e("s_lshl_b32 s42, s3, 1")
    e("v_add_u32 v3, s42, v3")
    for i in range(11):
        off = (i-3)*1024
        if off < 0:
            e(f"v_add_u32 v4, {off}, v3")
            e(f"buffer_load_dword v{16+i}, v4, s[28:31], 0 offen")
        else:
            e(f"s_mov_b32 s70, {off}")
            e(f"buffer_load_dword v{16+i}, v3, s[28:31], s70 offen")
    for i in range(8):
        e(f"s_mov_b32 s70, {i*1024}")
        e(f"buffer_load_dword v{32+i}, v3, s[32:35], s70 offen")
    e("s_lshl_b32 s43, s3, 12")
    e("v_lshlrev_b32 v5, 4, v0")
    e("buffer_load_dwordx4 v[40:43], v5, s[36:39], s43 offen")
    e("s_add_u32 s43, s43, 4096")
    e("buffer_load_dwordx4 v[44:47], v5, s[36:39], s43 offen")
    e("v_mov_b32 v48, 0"); e("v_mov_b32 v49, 0"); e("v_mov_b32 v50, 0"); e("v_mov_b32 v51, 0")
    e(f"ds_write_b128 v5, v[48:51] offset:{HC_BYTES}")
    e(f"v_add_u32 v6, {CH_BYTES+HC_BYTES}, v5")
    e("ds_write_b128 v6, v[48:51]")
    e("v_cmp_gt_u32 vcc, 4, v0")
    e("s_and_saveexec_b64 s[50:51], vcc")
    e(f"v_add_u32 v6, {HS_OFF}, v5")
    e("ds_write_b128 v6, v[48:51]")
    e(f"ds_write_b128 v6, v[48:51] offset:{HS_CH}")
    e(f"ds_write_b128 v6, v[48:51] offset:{64+4096}")
    e(f"ds_write_b128 v6, v[48:51] offset:{HS_CH+64+4096}")
    e("s_mov_b64 exec, s[50:51]")
    e("s_waitcnt vmcnt(0) lgkmcnt(0)")
    e(f"v_add_u32 v6, {HS_OFF+64}, v5")
    e("ds_write_b128 v6, v[40:43]")
    e(f"ds_write_b128 v6, v[44:47] offset:{HS_CH}")
    for ch in range(2):
        for q in range(4):
            sreg = 44 + 2*ch + (q>>1)
            if q & 1: e(f"s_and_b32 s{52+4*ch+q}, s{sreg}, 0xffff0000")
            else:     e(f"s_lshl_b32 s{52+4*ch+q}, s{sreg}, 16")
    def rb(dst, src):
        e(f"v_cvt_pk_bf16_f32 {dst}, {src}, {src}")
        e(f"v_lshlrev_b32 {dst}, 16, {dst}")
    for ch in range(2):
        for i in range(11):
            if ch: e(f"v_and_b32 v{64+i}, 0xffff0000, v{16+i}")
            else:  e(f"v_lshlrev_b32 v{64+i}, 16, v{16+i}")
        for i in range(8):
            if ch: e(f"v_and_b32 v{76+i}, 0xffff0000, v{32+i}")
            else:  e(f"v_lshlrev_b32 v{76+i}, 16, v{32+i}")
        for i in range(8):
            e(f"v_mul_f32 v84, s{52+4*ch+3}, v{64+i}");   rb("v84","v84")
            e(f"v_mul_f32 v85, s{52+4*ch+2}, v{64+i+1}"); rb("v85","v85")
            e("v_add_f32 v84, v84, v85");                 rb("v84","v84")
            e(f"v_mul_f32 v85, s{52+4*ch+1}, v{64+i+2}"); rb("v85","v85")
            e("v_add_f32 v84, v84, v85");                 rb("v84","v84")
            e(f"v_mul_f32 v85, s{52+4*ch+0}, v{64+i+3}"); rb("v85","v85")
            e("v_add_f32 v84, v84, v85");                 rb("v84","v84")
            e(f"v_mul_f32 v{88+i}, v84, v{76+i}")
        for j in range(4):
            e(f"v_cvt_pk_bf16_f32 v{96+j}, v{88+7-2*j}, v{88+6-2*j}")
        e(f"v_add_u32 v6, {ch*CH_BYTES+HC_BYTES+XB_ZERO}, v5")
        e("ds_write_b128 v6, v[96:99]")
    e("s_waitcnt lgkmcnt(0)")
    e("s_barrier")
    NIT = 2*8*261
    for it in range((NIT+255)//256):
        e(f"v_add_u32 v7, {it*256}, v0")
        e(f"v_cmp_gt_u32 vcc, {NIT}, v7")
        e("s_and_saveexec_b64 s[50:51], vcc")
        e("v_mul_u32_u24 v8, 16071, v7")
        e("v_lshrrev_b32 v8, 22, v8")
        e("v_mul_u32_u24 v9, 261, v8")
        e("v_sub_u32 v9, v7, v9")
        e("v_lshrrev_b32 v10, 3, v8")
        e("v_and_b32 v11, 7, v8")
        e(f"v_mul_u32_u24 v12, {HS_CH}, v10")
        e("v_lshl_add_u32 v12, v9, 4, v12")
        e("v_lshrrev_b32 v13, 1, v11")
        e("v_lshl_add_u32 v12, v13, 2, v12")
        e(f"v_add_u32 v12, {HS_OFF}, v12")
        e("ds_read2_b32 v[20:21], v12 offset0:0 offset1:1")
        e("ds_read2_b32 v[22:23], v12 offset0:2 offset1:3")
        e("ds_read_b32 v24, v12 offset:16")
        e("v_and_b32 v13, 1, v11")
        e("v_lshlrev_b32 v13, 1, v13")
        e(f"v_mul_u32_u24 v14, {CH_BYTES}, v10")
        e(f"v_mul_u32_u24 v15, {CP_BYTES}, v11")
        e("v_add_u32 v14, v14, v15")
        e("v_lshl_add_u32 v14, v9, 4, v14")
        e("s_waitcnt lgkmcnt(0)")
        for i in range(4):
            e(f"v_alignbyte_b32 v{28+i}, v{21+i}, v{20+i}, v13")
        e("ds_write_b128 v14, v[28:31]")
        e("s_mov_b64 exec, s[50:51]")
    e("s_waitcnt lgkmcnt(0)")
    e("s_barrier")
    e("v_readfirstlane_b32 s60, v2")
    e("s_nop 3")
    e("s_lshr_b32 s61, s60, 1")
    e("s_and_b32 s62, s60, 1")
    e(f"s_mul_i32 s63, s61, {CH_BYTES}")
    e("v_and_b32 v8, 31, v1")
    e("v_lshrrev_b32 v9, 5, v1")
    e("v_add_u32 v10, 1, v8")
    e("v_and_b32 v10, 7, v10")
    e("v_add_u32 v11, 25, v8")
    e("v_sub_u32 v11, v11, v10")
    e("v_lshrrev_b32 v11, 3, v11")
    e("v_sub_u32 v11, v11, v9")
    e(f"v_mul_u32_u24 v12, {CP_BYTES}, v10")
    e("v_lshl_add_u32 v12, v11, 4, v12")
    e("v_add_u32 v12, s63, v12")
    e("v_subrev_u32 v12, 32, v12")
    e("s_lshl_b32 s64, s62, 5")
    e("v_add_u32 v13, s64, v8")
    e("v_lshlrev_b32 v13, 2, v13")
    e("v_add_u32 v13, v13, v9")
    e("v_lshlrev_b32 v13, 4, v13")
    e(f"s_add_u32 s65, s63, {HC_BYTES+XB_ZERO}")
    e("v_add_u32 v13, s65, v13")
    for i in range(16): e(f"v_mov_b32 v{32+i}, 0")
    e("s_lshl_b32 s66, s62, 5")
    e("s_add_u32 s66, s66, 32")
    e("s_mov_b32 s67, 0")
    lab("K1_CONV_LOOP")
    e("ds_read_b128 v[16:19], v12 offset:32")
    e("ds_read_b128 v[20:23], v13")
    e("ds_read_b128 v[24:27], v12")
    e("ds_read_b128 v[28:31], v13 offset:32")
    e("v_add_u32 v12, 64, v12")
    e("v_subrev_u32 v13, 64, v13")
    e("s_waitcnt lgkmcnt(2)")
    e("v_mfma_f32_32x32x16_bf16 v[32:47], v[16:19], v[20:23], v[32:47]")
    e("s_waitcnt lgkmcnt(0)")
    e("v_mfma_f32_32x32x16_bf16 v[32:47], v[24:27], v[28:31], v[32:47]")
    e("s_add_u32 s67, s67, 1")
    e("s_cmp_lt_u32 s67, s66")
    e("s_cbranch_scc1 K1_CONV_LOOP")
    e("s_nop 7"); e("s_nop 7")
    e("s_lshl_b32 s68, s61, 4")
    e("s_lshr_b32 s68, s48, s68")
    e("s_lshl_b32 s68, s68, 16")
    e("v_add_u32 v13, s64, v8")
    e("v_lshlrev_b32 v14, 6, v13")
    e("v_add_u32 v14, s65, v14")
    e("v_sub_u32 v15, 1, v9")
    e("v_lshl_add_u32 v14, v15, 3, v14")
    for j in range(4):
        e(f"ds_read_b64 v[{16+2*j}:{17+2*j}], v14 offset:{16*j}")
    e("s_add_u32 s69, s3, s61")
    e("s_lshl_b32 s69, s69, 12")
    e(f"s_add_u32 s69, s69, {WS_YT}")
    e("v_lshlrev_b32 v15, 6, v13")
    e("v_lshl_add_u32 v15, v9, 3, v15")
    e("v_add_u32 v15, s69, v15")
    e("s_waitcnt lgkmcnt(0)")
    for j in range(4):
        a, b = 16+2*j, 17+2*j
        e(f"v_and_b32 v48, 0xffff0000, v{b}")
        e(f"v_lshlrev_b32 v49, 16, v{b}")
        e(f"v_and_b32 v50, 0xffff0000, v{a}")
        e(f"v_lshlrev_b32 v51, 16, v{a}")
        for i in range(4):
            e(f"v_mul_f32 v{48+i}, s68, v{48+i}"); rb(f"v{48+i}", f"v{48+i}")
            rb(f"v{52+i}", f"v{32+4*j+i}")
            e(f"v_add_f32 v{48+i}, v{48+i}, v{52+i}")
        e("v_cvt_pk_bf16_f32 v56, v48, v49")
        e("v_cvt_pk_bf16_f32 v57, v50, v51")
        e(f"buffer_store_dwordx2 v[56:57], v15, s[24:27], 0 offen offset:{16*j}")
    lab("K1_END")
    e("s_endpgm")

def desc(name, vg=256):
    return f""".amdhsa_kernel {name}
  .amdhsa_next_free_vgpr {vg}
  .amdhsa_next_free_sgpr 102
  .amdhsa_accum_offset {vg}
  .amdhsa_group_segment_fixed_size 0
  .amdhsa_kernarg_size 104
  .amdhsa_user_sgpr_count 2
  .amdhsa_user_sgpr_kernarg_segment_ptr 1
  .amdhsa_system_sgpr_workgroup_id_x 1
.end_amdhsa_kernel"""

if __name__ == "__main__":
    import k2gen
    hdr = [f"; @launch kernel=k1_kernel grid=({K1_GRID},1,1) block=(256,1,1) lds={K1_LDS}",
           f"; @launch kernel=k2_kernel grid=(64,1,1) block=(512,1,1) lds={k2gen.K2_LDS}",
           '.amdgcn_target "amdgcn-amd-amdhsa--gfx950"', ".text", ".globl k1_kernel", ".p2align 8",
           ".type k1_kernel,@function"]
    k1()
    L.append(".globl k2_kernel"); L.append(".p2align 8"); L.append(".type k2_kernel,@function")
    k2gen.k2(L)
    out = "\n".join(hdr + L) + "\n.section .rodata,\"a\"\n.p2align 6\n" + desc("k1_kernel") + "\n.p2align 6\n" + desc("k2_kernel") + "\n"
    open(f"cdna_kernels/{NAME}.s", "w").write(out)
```

```python
WS_Q, WS_K, WS_VT, WS_YT, WS_WOT = 0, 2<<20, 4<<20, 6<<20, 8<<20
WS_O, WS_G = 9<<20, 11<<20
def mk(L):
    def e(s): L.append("    " + s)
    def lab(s): L.append(s + ":")
    def vr(a, n): return f"v[{a}:{a+n-1}]"
    def srd(d, b, nbytes):
        e(f"s_mov_b32 s{d}, s{b}"); e(f"s_and_b32 s{d+1}, s{b+1}, 0xffff")
        e(f"s_mov_b32 s{d+2}, {nbytes}"); e(f"s_mov_b32 s{d+3}, 0x00020000")
    def rb(dst, src):
        e(f"v_cvt_pk_bf16_f32 {dst}, {src}, {src}")
        e(f"v_lshlrev_b32 {dst}, 16, {dst}")
    return e, lab, vr, srd, rb

NEG = "0xf149f2ca"
def k2(L):
    e, lab, vr, srd, rb = mk(L)
    lab("k2_kernel")
    e("s_cmp_ge_u32 s2, 512")
    e("s_cbranch_scc1 K2_END")
    e("s_load_dwordx2 s[12:13], s[0:1], 96")
    e("v_and_b32 v1, 63, v0")
    e("v_lshrrev_b32 v2, 6, v0")
    e("s_lshr_b32 s4, s2, 3")
    e("s_and_b32 s5, s2, 7")
    e("s_lshl_b32 s3, s4, 5")
    e("v_readfirstlane_b32 s32, v2")
    e("s_waitcnt lgkmcnt(0)")
    srd(28, 12, 0x10000000)
    e("s_lshl_b32 s36, s5, 2")
    e("s_add_u32 s36, s36, s32")
    e("v_and_b32 v8, 31, v1")
    e("v_lshrrev_b32 v9, 5, v1")
    e("v_xor_b32 v10, 32, v1")
    e("v_lshlrev_b32 v10, 2, v10")
    e("s_sub_u32 s35, 8, s4")
    e("s_max_i32 s35, s35, 0")
    e("s_lshl_b32 s38, s36, 5")
    e("v_add_u32 v11, s3, v8")
    e("v_lshlrev_b32 v11, 10, v11")
    e("v_lshl_add_u32 v11, v9, 4, v11")
    e("v_add_u32 v11, s38, v11")
    e("buffer_load_dwordx4 v[16:19], v11, s[28:31], 0 offen")
    e(f"v_add_u32 v12, {WS_K - 256*1024}, v11")
    e("v_and_b32 v13, 15, v1")
    e("s_lshl_b32 s39, s36, 4")
    e("v_add_u32 v13, s39, v13")
    e("v_lshlrev_b32 v13, 12, v13")
    e("v_lshl_add_u32 v13, v9, 3, v13")
    e("s_lshl_b32 s39, s3, 1")
    e(f"s_add_u32 s39, s39, {WS_VT - 512}")
    e("v_add_u32 v13, s39, v13")
    KF, VF, SP, TM, AC = 20, 56, 128, 200, 216
    for t in range(9):
        e(f"s_cmp_lt_i32 s35, {t+1}")
        e(f"s_cbranch_scc0 K2_L{t}")
        e(f"s_mov_b32 s40, {t*32*1024}")
        e(f"buffer_load_dwordx4 {vr(KF+4*t,4)}, v12, s[28:31], s40 offen")
        for cc in range(2):
            e(f"buffer_load_dwordx2 {vr(VF+8*t+4*cc,2)}, v13, s[28:31], 0 offen offset:{t*64+cc*32}")
            e(f"buffer_load_dwordx2 {vr(VF+8*t+4*cc+2,2)}, v13, s[28:31], 0 offen offset:{t*64+cc*32+16}")
        lab(f"K2_L{t}")
    e("v_lshlrev_b32 v14, 2, v9")
    e(f"v_mov_b32 v15, {NEG}")
    e("v_mov_b32 v3, v15")
    e("s_waitcnt vmcnt(0)")
    for t in range(9):
        e(f"s_cmp_lt_i32 s35, {t+1}")
        e(f"s_cbranch_scc0 K2_SK{t}")
        for i in range(16): e(f"v_mov_b32 v{TM+i}, 0")
        e("s_nop 1")
        e(f"v_mfma_f32_32x32x16_bf16 {vr(TM,16)}, {vr(KF+4*t,4)}, v[16:19], {vr(TM,16)}")
        e("s_nop 7"); e("s_nop 4")
        if t in (0, 8):
            for j in range(4):
                for i in range(4):
                    r = TM+4*j+i
                    e(f"v_add_u32 v4, {8*j+i}, v14")
                    e("v_cmp_gt_u32 vcc, v4, v8" if t == 0 else "v_cmp_le_u32 vcc, v4, v8")
                    e("s_nop 1")
                    e(f"v_cndmask_b32 v{r}, v15, v{r}, vcc")
        for i in range(8):
            e(f"v_cvt_pk_bf16_f32 v{SP+8*t+i}, v{TM+2*i}, v{TM+2*i+1}")
            e(f"v_max3_f32 v3, v3, v{TM+2*i}, v{TM+2*i+1}")
        e(f"s_branch K2_DN{t}")
        lab(f"K2_SK{t}")
        for i in range(8): e(f"v_mov_b32 v{SP+8*t+i}, 0xf149f149")
        lab(f"K2_DN{t}")
    rb("v3", "v3")
    e("ds_bpermute_b32 v4, v10, v3")
    e("s_waitcnt lgkmcnt(0)")
    e("v_max_f32 v3, v3, v4")
    e("v_mov_b32 v5, 0x3eb8aa3b")
    e("v_mul_f32 v3, v5, v3")
    e("v_mov_b32 v6, 0")
    e("v_mov_b32 v7, 0")
    for r in range(72):
        e(f"v_lshlrev_b32 v{TM}, 16, v{SP+r}")
        e(f"v_and_b32 v{TM+1}, 0xffff0000, v{SP+r}")
        e(f"v_fma_f32 v{TM}, v{TM}, v5, -v3")
        e(f"v_fma_f32 v{TM+1}, v{TM+1}, v5, -v3")
        e(f"v_exp_f32 v{TM}, v{TM}")
        e(f"v_exp_f32 v{TM+1}, v{TM+1}")
        e("s_nop 0")
        e(f"v_add_f32 v6, v6, v{TM}")
        e(f"v_add_f32 v7, v7, v{TM+1}")
        e(f"v_cvt_pk_bf16_f32 v{SP+r}, v{TM}, v{TM+1}")
    e("v_add_f32 v6, v6, v7")
    e("ds_bpermute_b32 v4, v10, v6")
    for i in range(16): e(f"v_mov_b32 v{AC+i}, 0")
    e("s_waitcnt lgkmcnt(0)")
    e("v_add_f32 v6, v6, v4")
    e("v_rcp_f32 v6, v6")
    for t in range(9):
        e(f"s_cmp_lt_i32 s35, {t+1}")
        e(f"s_cbranch_scc0 K2_SV{t}")
        for cc in range(2):
            e(f"v_mfma_f32_32x32x16_bf16 {vr(AC,16)}, {vr(VF+8*t+4*cc,4)}, {vr(SP+8*t+4*cc,4)}, {vr(AC,16)}")
        lab(f"K2_SV{t}")
    e("s_nop 7"); e("s_nop 7")
    for i in range(8): e(f"v_mul_f32 v{AC+i}, v{AC+i}, v6")
    for i in range(4): e(f"v_cvt_pk_bf16_f32 v{AC+i}, v{AC+2*i}, v{AC+2*i+1}")
    e("v_add_u32 v11, s3, v8")
    e("v_lshlrev_b32 v11, 10, v11")
    e("v_lshl_add_u32 v11, v9, 3, v11")
    e(f"s_add_u32 s38, s38, {WS_O}")
    e("v_add_u32 v11, s38, v11")
    e(f"buffer_store_dwordx2 {vr(AC,2)}, v11, s[28:31], 0 offen")
    e(f"buffer_store_dwordx2 {vr(AC+2,2)}, v11, s[28:31], 0 offen offset:16")
    lab("K2_END")
    e("s_endpgm")

def k3(L):
    e, lab, vr, srd, rb = mk(L)
    lab("k3_kernel")
    e("s_cmp_ge_u32 s2, 128")
    e("s_cbranch_scc1 K3_END")
    e("s_load_dwordx2 s[4:5], s[0:1], 0")
    e("s_load_dwordx2 s[10:11], s[0:1], 80")
    e("s_load_dwordx2 s[12:13], s[0:1], 96")
    e("v_and_b32 v1, 63, v0")
    e("v_lshrrev_b32 v2, 6, v0")
    e("s_nop 1")
    e("v_readfirstlane_b32 s32, v2")
    e("s_lshr_b32 s3, s2, 1")
    e("s_lshl_b32 s3, s3, 5")
    e("s_and_b32 s33, s2, 1")
    e("s_lshl_b32 s33, s33, 2")
    e("s_add_u32 s33, s33, s32")
    e("s_lshl_b32 s36, s33, 6")
    e("s_waitcnt lgkmcnt(0)")
    srd(16, 4, 2048*512*2); srd(24, 10, 2048*512*2); srd(28, 12, 0x10000000)
    e("v_and_b32 v8, 31, v1")
    e("v_lshrrev_b32 v9, 5, v1")
    e("v_add_u32 v11, s36, v8")
    e("v_lshlrev_b32 v11, 10, v11")
    e("v_lshl_add_u32 v11, v9, 4, v11")
    e(f"v_add_u32 v11, {WS_WOT}, v11")
    e("v_add_u32 v12, s3, v8")
    e("v_lshlrev_b32 v12, 10, v12")
    e("v_lshl_add_u32 v12, v9, 4, v12")
    e(f"v_add_u32 v12, {WS_O}, v12")
    e("s_mov_b32 s40, 32768")
    e("v_add_u32 v13, s3, v8")
    e("v_lshlrev_b32 v14, 2, v13")
    e(f"v_add_u32 v14, {WS_G}, v14")
    e("v_lshlrev_b32 v13, 10, v13")
    e("v_lshl_add_u32 v13, v9, 3, v13")
    e("s_lshl_b32 s38, s36, 1")
    e("v_add_u32 v13, s38, v13")
    e("v_lshl_add_u32 v15, v9, 2, s36")
    e("v_lshlrev_b32 v15, 12, v15")
    e("v_add_u32 v3, s3, v8")
    e("v_lshl_add_u32 v15, v3, 1, v15")
    e(f"v_add_u32 v15, {WS_YT}, v15")
    XB, YB, FB = 64, 80, 112
    e("buffer_load_dword v4, v14, s[28:31], 0 offen")
    for t in range(2):
        for j in range(4):
            o = t*32+8*j
            e(f"buffer_load_dwordx2 {vr(XB+2*(4*t+j),2)}, v13, s[16:19], 0 offen offset:{o*2}")
            for i in range(4):
                e(f"s_mov_b32 s41, {(o+i)*4096}")
                e(f"buffer_load_ushort v{YB+4*(4*t+j)+i}, v15, s[28:31], s41 offen")
    def loads(ch):
        b = FB + (ch&1)*48
        for k in range(4):
            kk = ch*4+k
            e(f"buffer_load_dwordx4 {vr(b+12*k,4)}, v11, s[28:31], 0 offen offset:{kk*32}")
            e(f"buffer_load_dwordx4 {vr(b+12*k+4,4)}, v11, s[28:31], s40 offen offset:{kk*32}")
            e(f"buffer_load_dwordx4 {vr(b+12*k+8,4)}, v12, s[28:31], 0 offen offset:{kk*32}")
    for i in range(32): e(f"v_mov_b32 v{32+i}, 0")
    loads(0)
    for ch in range(8):
        if ch < 7: loads(ch+1); e("s_waitcnt vmcnt(12)")
        else: e("s_waitcnt vmcnt(0)")
        b = FB + (ch&1)*48
        for k in range(4):
            e(f"v_mfma_f32_32x32x16_bf16 v[32:47], {vr(b+12*k,4)}, {vr(b+12*k+8,4)}, v[32:47]")
            e(f"v_mfma_f32_32x32x16_bf16 v[48:63], {vr(b+12*k+4,4)}, {vr(b+12*k+8,4)}, v[48:63]")
    e("s_nop 7"); e("s_nop 7")
    e("v_sub_f32 v5, 1.0, v4"); rb("v5","v5")
    for t in range(2):
        for j in range(4):
            o = t*32+8*j; g = 4*t+j
            e(f"v_lshlrev_b32 v24, 16, v{XB+2*g}"); e(f"v_and_b32 v25, 0xffff0000, v{XB+2*g}")
            e(f"v_lshlrev_b32 v26, 16, v{XB+2*g+1}"); e(f"v_and_b32 v27, 0xffff0000, v{XB+2*g+1}")
            for i in range(4):
                e(f"v_lshlrev_b32 v{20+i}, 16, v{YB+4*g+i}")
                e(f"v_mul_f32 v{20+i}, v{20+i}, v{24+i}"); rb(f"v{20+i}", f"v{20+i}")
                e(f"v_mul_f32 v{20+i}, v4, v{20+i}"); rb(f"v{20+i}", f"v{20+i}")
                rb(f"v{24+i}", f"v{32+16*t+4*j+i}")
                e(f"v_mul_f32 v{24+i}, v5, v{24+i}"); rb(f"v{24+i}", f"v{24+i}")
                e(f"v_add_f32 v{20+i}, v{20+i}, v{24+i}")
            e(f"v_cvt_pk_bf16_f32 v{28+2*(g&1)}, v20, v21")
            e(f"v_cvt_pk_bf16_f32 v{29+2*(g&1)}, v22, v23")
            e(f"buffer_store_dwordx2 {vr(28+2*(g&1),2)}, v13, s[24:27], 0 offen offset:{o*2}")
    lab("K3_END")
    e("s_endpgm")
```

```python
import sys
NAME = "gated_mix__ssm_conv_h3__sliding_block__prompt"
L = []
def e(s): L.append("    " + s)
def lab(s): L.append(s + ":")
def c(s): L.append("    ; " + s)

WS_Q, WS_K, WS_VT, WS_YT, WS_WOT = 0, 2<<20, 4<<20, 6<<20, 8<<20
SRD3 = "0x00020000"

def srd(d, b, nbytes):
    e(f"s_mov_b32 s{d}, s{b}")
    e(f"s_and_b32 s{d+1}, s{b+1}, 0xffff")
    e(f"s_mov_b32 s{d+2}, {nbytes}")
    e(f"s_mov_b32 s{d+3}, {SRD3}")

def vr(a, n): return f"v[{a}:{a+n-1}]"

N_CONV, N_GEMM, N_WOT, N_GATE = 256, 384, 128, 128
K1_GRID = N_CONV + N_GEMM + N_WOT + N_GATE
WSTR = 144
CP_BYTES = 261*16
HC_BYTES = 8*CP_BYTES
XB_ZERO = 256*16
XB_BYTES = XB_ZERO + 256*16
CH_BYTES = HC_BYTES + XB_BYTES
HS_OFF = 2*CH_BYTES
HS_CH = (32+2048+32)*2
K1_LDS = max(512*WSTR, HS_OFF + 2*HS_CH)

def k1():
    lab(f"k1_kernel")
    e(f"s_cmp_ge_u32 s2, {K1_GRID}")
    e("s_cbranch_scc1 K1_END")
    e("s_load_dwordx4 s[4:7], s[0:1], 0")
    e("s_load_dwordx4 s[8:11], s[0:1], 16")
    e("s_load_dwordx4 s[12:15], s[0:1], 32")
    e("s_load_dwordx4 s[16:19], s[0:1], 56")
    e("s_load_dwordx2 s[20:21], s[0:1], 96")
    e("v_and_b32 v1, 63, v0")
    e("v_lshrrev_b32 v2, 6, v0")
    e("s_waitcnt lgkmcnt(0)")
    srd(24, 20, 0x10000000)
    e(f"s_cmp_lt_u32 s2, {N_CONV}")
    e("s_cbranch_scc1 K1_CONV")
    e(f"s_cmp_lt_u32 s2, {N_CONV+N_GEMM}")
    e("s_cbranch_scc1 K1_GEMM")
    e(f"s_cmp_lt_u32 s2, {N_CONV+N_GEMM+N_WOT}")
    e("s_cbranch_scc1 K1_WOT")
    e("s_load_dwordx2 s[40:41], s[0:1], 72")
    srd(28, 4, 2048*512*2)
    e("s_waitcnt lgkmcnt(0)")
    srd(32, 40, 1024)
    e(f"s_sub_u32 s3, s2, {N_CONV+N_GEMM+N_WOT}")
    e("s_lshl_b32 s3, s3, 4")
    e("v_lshrrev_b32 v6, 4, v0")
    e("v_add_u32 v6, s3, v6")
    e("v_and_b32 v7, 15, v0")
    e("v_lshlrev_b32 v8, 10, v6")
    e("v_lshl_add_u32 v8, v7, 6, v8")
    e("v_lshlrev_b32 v9, 6, v7")
    for i in range(4):
        e(f"buffer_load_dwordx4 {vr(80+4*i,4)}, v8, s[28:31], 0 offen offset:{16*i}")
        e(f"buffer_load_dwordx4 {vr(96+4*i,4)}, v9, s[32:35], 0 offen offset:{16*i}")
    e("s_waitcnt vmcnt(0)")
    e("v_mov_b32 v11, 0")
    for i in range(16):
        for hi in range(2):
            if hi: e(f"v_and_b32 v12, 0xffff0000, v{80+i}"); e(f"v_and_b32 v13, 0xffff0000, v{96+i}")
            else:  e(f"v_lshlrev_b32 v12, 16, v{80+i}"); e(f"v_lshlrev_b32 v13, 16, v{96+i}")
            e("v_mul_f32 v12, v12, v13")
            e("v_cvt_pk_bf16_f32 v12, v12, v12"); e("v_lshlrev_b32 v12, 16, v12")
            e("v_add_f32 v11, v11, v12")
    for x in (1,2,4,8):
        e(f"ds_swizzle_b32 v12, v11 offset:{(x<<10)|0x1f}")
        e("s_waitcnt lgkmcnt(0)")
        e("v_add_f32 v11, v11, v12")
    e("v_cvt_pk_bf16_f32 v11, v11, v11"); e("v_lshlrev_b32 v11, 16, v11")
    e("v_mul_f32 v11, 0xbfb8aa3b, v11")
    e("v_exp_f32 v11, v11")
    e("s_nop 0")
    e("v_add_f32 v11, 1.0, v11")
    e("v_rcp_f32 v11, v11")
    e("s_nop 0")
    e("v_cvt_pk_bf16_f32 v11, v11, v11"); e("v_lshlrev_b32 v11, 16, v11")
    e("v_lshlrev_b32 v12, 2, v6")
    e(f"v_add_u32 v12, {11<<20}, v12")
    e("buffer_store_dword v11, v12, s[24:27], 0 offen")
    e("s_endpgm")
    lab("K1_WOT")
    srd(28, 18, 512*512*2)
    e(f"s_sub_u32 s3, s2, {N_CONV+N_GEMM}")
    e("s_lshl_b32 s3, s3, 8")
    e("v_add_u32 v3, s3, v0")
    e("v_and_b32 v4, 511, v3")
    e("v_lshrrev_b32 v5, 9, v3")
    e("v_lshlrev_b32 v6, 13, v5")
    e("v_lshl_add_u32 v6, v4, 1, v6")
    for i in range(8):
        e(f"s_mov_b32 s70, {i*1024}")
        e(f"buffer_load_ushort v{8+i}, v6, s[28:31], s70 offen")
    e("s_waitcnt vmcnt(0)")
    for i in range(4):
        e(f"v_lshlrev_b32 v{9+2*i}, 16, v{9+2*i}")
        e(f"v_or_b32 v{16+i}, v{8+2*i}, v{9+2*i}")
    e("v_lshlrev_b32 v6, 10, v4")
    e("v_lshl_add_u32 v6, v5, 4, v6")
    e(f"v_add_u32 v6, {WS_WOT}, v6")
    e("buffer_store_dwordx4 v[16:19], v6, s[24:27], 0 offen")
    e("s_endpgm")
    lab("K1_GEMM")
    srd(28, 4, 2048*512*2)
    srd(32, 16, 512*1536*2)
    e(f"s_sub_u32 s3, s2, {N_CONV}")
    e("s_mul_i32 s36, s3, 2731")
    e("s_lshr_b32 s36, s36, 16")
    e("s_mul_i32 s37, s36, 24")
    e("s_sub_u32 s37, s3, s37")
    e("s_lshl_b32 s38, s37, 7")
    e("v_lshrrev_b32 v3, 3, v0")
    e("v_and_b32 v4, 7, v0")
    e("v_mul_u32_u24 v5, 3072, v3")
    e("v_lshl_add_u32 v5, v4, 4, v5")
    e(f"v_mul_u32_u24 v6, {WSTR}, v3")
    e("v_lshl_add_u32 v6, v4, 4, v6")
    for i in range(16):
        e(f"s_mov_b32 s39, {i*32*3072}")
        e(f"s_add_u32 s39, s39, s38")
        e(f"buffer_load_dwordx4 {vr(64+4*i,4)}, v5, s[32:35], s39 offen")
    e("s_lshl_b32 s40, s36, 7")
    e("v_lshlrev_b32 v7, 5, v2")
    e("v_add_u32 v7, s40, v7")
    e("v_and_b32 v8, 31, v1")
    e("v_add_u32 v8, v7, v8")
    e("v_lshlrev_b32 v8, 10, v8")
    e("v_lshrrev_b32 v9, 5, v1")
    e("v_lshl_add_u32 v8, v9, 4, v8")
    for kk in range(32):
        e(f"buffer_load_dwordx4 {vr(128+4*kk,4)}, v8, s[28:31], 0 offen offset:{kk*32}")
    for i in range(16):
        e(f"s_waitcnt vmcnt({32+15-i})")
        if i == 8: e(f"v_add_u32 v6, {8*32*WSTR}, v6")
        e(f"ds_write_b128 v6, {vr(64+4*i,4)} offset:{(i%8)*32*WSTR}")
    e("v_lshrrev_b32 v10, 4, v1")
    e("v_and_b32 v11, 15, v1")
    e("v_lshrrev_b32 v12, 1, v10")
    e("v_lshlrev_b32 v12, 3, v12")
    e("v_lshrrev_b32 v13, 2, v11")
    e("v_add_u32 v12, v12, v13")
    e(f"v_mul_u32_u24 v12, {WSTR}, v12")
    e("v_and_b32 v13, 1, v10")
    e("v_lshlrev_b32 v13, 5, v13")
    e("v_and_b32 v14, 3, v11")
    e("v_lshl_add_u32 v13, v14, 3, v13")
    e("v_add_u32 v12, v12, v13")
    e(f"v_add_u32 v13, {16*16*WSTR}, v12")
    for i in range(32):
        e(f"v_mov_b32 v{16+i}, 0")
    e("s_waitcnt vmcnt(0) lgkmcnt(0)")
    e("s_barrier")
    e("s_cmp_ge_u32 s37, 16")
    e("s_cbranch_scc1 K1_GEMM_V")
    def gemm_loop(swap):
        for kk in range(32):
            base = 12 if kk < 16 else 13
            k2 = kk % 16
            for t in range(2):
                for rd in range(2):
                    e(f"ds_read_b64_tr_b16 {vr(64+8*t+2*rd,2)}, v{base} offset:{k2*16*WSTR+rd*4*WSTR+t*64}")
            e("s_waitcnt lgkmcnt(0)")
            for t in range(2):
                W = vr(64+8*t,4); X = vr(128+4*kk,4); D = vr(16+16*t,16)
                if swap: e(f"v_mfma_f32_32x32x16_bf16 {D}, {X}, {W}, {D}")
                else:    e(f"v_mfma_f32_32x32x16_bf16 {D}, {W}, {X}, {D}")
    gemm_loop(False)
    e("s_nop 7"); e("s_nop 7")
    e("s_lshr_b32 s41, s37, 3")
    e("s_lshl_b32 s41, s41, 21")
    e("s_and_b32 s42, s37, 7")
    e("s_lshl_b32 s42, s42, 7")
    e("s_add_u32 s41, s41, s42")
    e("v_and_b32 v8, 31, v1")
    e("v_add_u32 v8, v7, v8")
    e("v_lshlrev_b32 v8, 10, v8")
    e("v_lshl_add_u32 v8, v9, 3, v8")
    e("v_add_u32 v8, s41, v8")
    for t in range(2):
        for j in range(4):
            b = 16+16*t+4*j
            e(f"v_cvt_pk_bf16_f32 v{48+2*(j&1)}, v{b}, v{b+1}")
            e(f"v_cvt_pk_bf16_f32 v{49+2*(j&1)}, v{b+2}, v{b+3}")
            e(f"buffer_store_dwordx2 {vr(48+2*(j&1),2)}, v8, s[24:27], 0 offen offset:{t*64+j*16}")
    e("s_endpgm")
    lab("K1_GEMM_V")
    gemm_loop(True)
    e("s_nop 7"); e("s_nop 7")
    e("s_and_b32 s42, s37, 7")
    e("s_lshl_b32 s42, s42, 6")
    e("v_and_b32 v8, 31, v1")
    e("v_add_u32 v8, s42, v8")
    e("v_lshlrev_b32 v8, 12, v8")
    e("v_lshl_add_u32 v8, v7, 1, v8")
    e("v_lshl_add_u32 v8, v9, 3, v8")
    e(f"v_add_u32 v8, {WS_VT}, v8")
    for t in range(2):
        e(f"v_add_u32 v10, {t*32*4096}, v8")
        for j in range(4):
            b = 16+16*t+4*j
            e(f"v_cvt_pk_bf16_f32 v{48+2*(j&1)}, v{b}, v{b+1}")
            e(f"v_cvt_pk_bf16_f32 v{49+2*(j&1)}, v{b+2}, v{b+3}")
            e(f"buffer_store_dwordx2 {vr(48+2*(j&1),2)}, v10, s[24:27], 0 offen offset:{j*16}")
    e("s_endpgm")
    lab("K1_CONV")
    srd(28, 6, 2048*512*2)
    srd(32, 8, 2048*512*2)
    srd(36, 12, 512*2048*2)
    e("s_lshl_b32 s3, s2, 1")
    e("s_lshl_b32 s40, s3, 3")
    e("s_load_dwordx4 s[44:47], s[10:11], s40")
    e("s_lshl_b32 s41, s3, 1")
    e("s_load_dword s48, s[14:15], s41")
    e("v_lshlrev_b32 v3, 13, v0")
    e("s_lshl_b32 s42, s3, 1")
    e("v_add_u32 v3, s42, v3")
    for i in range(11):
        off = (i-3)*1024
        if off < 0:
            e(f"v_add_u32 v4, {off}, v3")
            e(f"buffer_load_dword v{16+i}, v4, s[28:31], 0 offen")
        else:
            e(f"s_mov_b32 s70, {off}")
            e(f"buffer_load_dword v{16+i}, v3, s[28:31], s70 offen")
    for i in range(8):
        e(f"s_mov_b32 s70, {i*1024}")
        e(f"buffer_load_dword v{32+i}, v3, s[32:35], s70 offen")
    e("s_lshl_b32 s43, s3, 12")
    e("v_lshlrev_b32 v5, 4, v0")
    e("buffer_load_dwordx4 v[40:43], v5, s[36:39], s43 offen")
    e("s_add_u32 s43, s43, 4096")
    e("buffer_load_dwordx4 v[44:47], v5, s[36:39], s43 offen")
    e("v_mov_b32 v48, 0"); e("v_mov_b32 v49, 0"); e("v_mov_b32 v50, 0"); e("v_mov_b32 v51, 0")
    e(f"ds_write_b128 v5, v[48:51] offset:{HC_BYTES}")
    e(f"v_add_u32 v6, {CH_BYTES+HC_BYTES}, v5")
    e("ds_write_b128 v6, v[48:51]")
    e("v_cmp_gt_u32 vcc, 4, v0")
    e("s_and_saveexec_b64 s[50:51], vcc")
    e(f"v_add_u32 v6, {HS_OFF}, v5")
    e("ds_write_b128 v6, v[48:51]")
    e(f"ds_write_b128 v6, v[48:51] offset:{HS_CH}")
    e(f"ds_write_b128 v6, v[48:51] offset:{64+4096}")
    e(f"ds_write_b128 v6, v[48:51] offset:{HS_CH+64+4096}")
    e("s_mov_b64 exec, s[50:51]")
    e("s_waitcnt vmcnt(0) lgkmcnt(0)")
    e(f"v_add_u32 v6, {HS_OFF+64}, v5")
    e("ds_write_b128 v6, v[40:43]")
    e(f"ds_write_b128 v6, v[44:47] offset:{HS_CH}")
    for ch in range(2):
        for q in range(4):
            sreg = 44 + 2*ch + (q>>1)
            if q & 1: e(f"s_and_b32 s{52+4*ch+q}, s{sreg}, 0xffff0000")
            else:     e(f"s_lshl_b32 s{52+4*ch+q}, s{sreg}, 16")
    def rb(dst, src):
        e(f"v_cvt_pk_bf16_f32 {dst}, {src}, {src}")
        e(f"v_lshlrev_b32 {dst}, 16, {dst}")
    for ch in range(2):
        for i in range(11):
            if ch: e(f"v_and_b32 v{64+i}, 0xffff0000, v{16+i}")
            else:  e(f"v_lshlrev_b32 v{64+i}, 16, v{16+i}")
        for i in range(8):
            if ch: e(f"v_and_b32 v{76+i}, 0xffff0000, v{32+i}")
            else:  e(f"v_lshlrev_b32 v{76+i}, 16, v{32+i}")
        for i in range(8):
            e(f"v_mul_f32 v84, s{52+4*ch+3}, v{64+i}");   rb("v84","v84")
            e(f"v_mul_f32 v85, s{52+4*ch+2}, v{64+i+1}"); rb("v85","v85")
            e("v_add_f32 v84, v84, v85");                 rb("v84","v84")
            e(f"v_mul_f32 v85, s{52+4*ch+1}, v{64+i+2}"); rb("v85","v85")
            e("v_add_f32 v84, v84, v85");                 rb("v84","v84")
            e(f"v_mul_f32 v85, s{52+4*ch+0}, v{64+i+3}"); rb("v85","v85")
            e("v_add_f32 v84, v84, v85");                 rb("v84","v84")
            e(f"v_mul_f32 v{88+i}, v84, v{76+i}")
        for j in range(4):
            e(f"v_cvt_pk_bf16_f32 v{96+j}, v{88+7-2*j}, v{88+6-2*j}")
        e(f"v_add_u32 v6, {ch*CH_BYTES+HC_BYTES+XB_ZERO}, v5")
        e("ds_write_b128 v6, v[96:99]")
    e("s_waitcnt lgkmcnt(0)")
    e("s_barrier")
    NIT = 2*8*261
    for it in range((NIT+255)//256):
        e(f"v_add_u32 v7, {it*256}, v0")
        e(f"v_cmp_gt_u32 vcc, {NIT}, v7")
        e("s_and_saveexec_b64 s[50:51], vcc")
        e("v_mul_u32_u24 v8, 16071, v7")
        e("v_lshrrev_b32 v8, 22, v8")
        e("v_mul_u32_u24 v9, 261, v8")
        e("v_sub_u32 v9, v7, v9")
        e("v_lshrrev_b32 v10, 3, v8")
        e("v_and_b32 v11, 7, v8")
        e(f"v_mul_u32_u24 v12, {HS_CH}, v10")
        e("v_lshl_add_u32 v12, v9, 4, v12")
        e("v_lshrrev_b32 v13, 1, v11")
        e("v_lshl_add_u32 v12, v13, 2, v12")
        e(f"v_add_u32 v12, {HS_OFF}, v12")
        e("ds_read2_b32 v[20:21], v12 offset0:0 offset1:1")
        e("ds_read2_b32 v[22:23], v12 offset0:2 offset1:3")
        e("ds_read_b32 v24, v12 offset:16")
        e("v_and_b32 v13, 1, v11")
        e("v_lshlrev_b32 v13, 1, v13")
        e(f"v_mul_u32_u24 v14, {CH_BYTES}, v10")
        e(f"v_mul_u32_u24 v15, {CP_BYTES}, v11")
        e("v_add_u32 v14, v14, v15")
        e("v_lshl_add_u32 v14, v9, 4, v14")
        e("s_waitcnt lgkmcnt(0)")
        for i in range(4):
            e(f"v_alignbyte_b32 v{28+i}, v{21+i}, v{20+i}, v13")
        e("ds_write_b128 v14, v[28:31]")
        e("s_mov_b64 exec, s[50:51]")
    e("s_waitcnt lgkmcnt(0)")
    e("s_barrier")
    e("v_readfirstlane_b32 s60, v2")
    e("s_nop 3")
    e("s_lshr_b32 s61, s60, 1")
    e("s_and_b32 s62, s60, 1")
    e(f"s_mul_i32 s63, s61, {CH_BYTES}")
    e("v_and_b32 v8, 31, v1")
    e("v_lshrrev_b32 v9, 5, v1")
    e("v_add_u32 v10, 1, v8")
    e("v_and_b32 v10, 7, v10")
    e("v_add_u32 v11, 25, v8")
    e("v_sub_u32 v11, v11, v10")
    e("v_lshrrev_b32 v11, 3, v11")
    e("v_sub_u32 v11, v11, v9")
    e(f"v_mul_u32_u24 v12, {CP_BYTES}, v10")
    e("v_lshl_add_u32 v12, v11, 4, v12")
    e("v_add_u32 v12, s63, v12")
    e("v_subrev_u32 v12, 32, v12")
    e("s_lshl_b32 s64, s62, 5")
    e("v_add_u32 v13, s64, v8")
    e("v_lshlrev_b32 v13, 2, v13")
    e("v_add_u32 v13, v13, v9")
    e("v_lshlrev_b32 v13, 4, v13")
    e(f"s_add_u32 s65, s63, {HC_BYTES+XB_ZERO}")
    e("v_add_u32 v13, s65, v13")
    for i in range(16): e(f"v_mov_b32 v{32+i}, 0")
    e("s_lshl_b32 s66, s62, 5")
    e("s_add_u32 s66, s66, 32")
    e("s_mov_b32 s67, 0")
    lab("K1_CONV_LOOP")
    e("ds_read_b128 v[16:19], v12 offset:32")
    e("ds_read_b128 v[20:23], v13")
    e("ds_read_b128 v[24:27], v12")
    e("ds_read_b128 v[28:31], v13 offset:32")
    e("v_add_u32 v12, 64, v12")
    e("v_subrev_u32 v13, 64, v13")
    e("s_waitcnt lgkmcnt(2)")
    e("v_mfma_f32_32x32x16_bf16 v[32:47], v[16:19], v[20:23], v[32:47]")
    e("s_waitcnt lgkmcnt(0)")
    e("v_mfma_f32_32x32x16_bf16 v[32:47], v[24:27], v[28:31], v[32:47]")
    e("s_add_u32 s67, s67, 1")
    e("s_cmp_lt_u32 s67, s66")
    e("s_cbranch_scc1 K1_CONV_LOOP")
    e("s_nop 7"); e("s_nop 7")
    e("s_lshl_b32 s68, s61, 4")
    e("s_lshr_b32 s68, s48, s68")
    e("s_lshl_b32 s68, s68, 16")
    e("v_add_u32 v13, s64, v8")
    e("v_lshlrev_b32 v14, 6, v13")
    e("v_add_u32 v14, s65, v14")
    e("v_sub_u32 v15, 1, v9")
    e("v_lshl_add_u32 v14, v15, 3, v14")
    for j in range(4):
        e(f"ds_read_b64 v[{16+2*j}:{17+2*j}], v14 offset:{16*j}")
    e("s_add_u32 s69, s3, s61")
    e("s_lshl_b32 s69, s69, 12")
    e(f"s_add_u32 s69, s69, {WS_YT}")
    e("v_lshlrev_b32 v15, 6, v13")
    e("v_lshl_add_u32 v15, v9, 3, v15")
    e("v_add_u32 v15, s69, v15")
    e("s_waitcnt lgkmcnt(0)")
    for j in range(4):
        a, b = 16+2*j, 17+2*j
        e(f"v_and_b32 v48, 0xffff0000, v{b}")
        e(f"v_lshlrev_b32 v49, 16, v{b}")
        e(f"v_and_b32 v50, 0xffff0000, v{a}")
        e(f"v_lshlrev_b32 v51, 16, v{a}")
        for i in range(4):
            e(f"v_mul_f32 v{48+i}, s68, v{48+i}"); rb(f"v{48+i}", f"v{48+i}")
            rb(f"v{52+i}", f"v{32+4*j+i}")
            e(f"v_add_f32 v{48+i}, v{48+i}, v{52+i}")
        e("v_cvt_pk_bf16_f32 v56, v48, v49")
        e("v_cvt_pk_bf16_f32 v57, v50, v51")
        e(f"buffer_store_dwordx2 v[56:57], v15, s[24:27], 0 offen offset:{16*j}")
    lab("K1_END")
    e("s_endpgm")

def desc(name, vg=256):
    return f""".amdhsa_kernel {name}
  .amdhsa_next_free_vgpr {vg}
  .amdhsa_next_free_sgpr 102
  .amdhsa_accum_offset {vg}
  .amdhsa_group_segment_fixed_size 0
  .amdhsa_kernarg_size 104
  .amdhsa_user_sgpr_count 2
  .amdhsa_user_sgpr_kernarg_segment_ptr 1
  .amdhsa_system_sgpr_workgroup_id_x 1
.end_amdhsa_kernel"""

if __name__ == "__main__":
    import k2gen
    hdr = [f"; @launch kernel=k1_kernel grid=({K1_GRID},1,1) block=(256,1,1) lds={K1_LDS}",
           f"; @launch kernel=k2_kernel grid=(512,1,1) block=(256,1,1) lds=0",
           f"; @launch kernel=k3_kernel grid=(128,1,1) block=(256,1,1) lds=0",
           '.amdgcn_target "amdgcn-amd-amdhsa--gfx950"', ".text", ".globl k1_kernel", ".p2align 8",
           ".type k1_kernel,@function"]
    k1()
    L.append(".globl k2_kernel"); L.append(".p2align 8"); L.append(".type k2_kernel,@function")
    k2gen.k2(L)
    L.append(".globl k3_kernel"); L.append(".p2align 8"); L.append(".type k3_kernel,@function")
    k2gen.k3(L)
    out = "\n".join(hdr + L) + "\n.section .rodata,\"a\"\n.p2align 6\n" + desc("k1_kernel") + "\n.p2align 6\n" + desc("k2_kernel") + "\n.p2align 6\n" + desc("k3_kernel") + "\n"
    open(f"cdna_kernels/{NAME}.s", "w").write(out)
```

```python
WS_Q, WS_K, WS_VT, WS_YT, WS_WOT = 0, 2<<20, 4<<20, 6<<20, 8<<20
WS_O, WS_G = 9<<20, 11<<20
def mk(L):
    def e(s): L.append("    " + s)
    def lab(s): L.append(s + ":")
    def vr(a, n): return f"v[{a}:{a+n-1}]"
    def srd(d, b, nbytes):
        e(f"s_mov_b32 s{d}, s{b}"); e(f"s_and_b32 s{d+1}, s{b+1}, 0xffff")
        e(f"s_mov_b32 s{d+2}, {nbytes}"); e(f"s_mov_b32 s{d+3}, 0x00020000")
    def rb(dst, src):
        e(f"v_cvt_pk_bf16_f32 {dst}, {src}, {src}")
        e(f"v_lshlrev_b32 {dst}, 16, {dst}")
    return e, lab, vr, srd, rb

NEG = "0xf149f2ca"
def k2(L):
    e, lab, vr, srd, rb = mk(L)
    lab("k2_kernel")
    e("s_cmp_ge_u32 s2, 512")
    e("s_cbranch_scc1 K2_END")
    e("s_load_dwordx2 s[12:13], s[0:1], 96")
    e("v_and_b32 v1, 63, v0")
    e("v_lshrrev_b32 v2, 6, v0")
    e("s_lshr_b32 s4, s2, 3")
    e("s_and_b32 s5, s2, 7")
    e("s_lshl_b32 s3, s4, 5")
    e("v_readfirstlane_b32 s32, v2")
    e("s_waitcnt lgkmcnt(0)")
    srd(28, 12, 0x10000000)
    e("s_lshl_b32 s36, s5, 2")
    e("s_add_u32 s36, s36, s32")
    e("v_and_b32 v8, 31, v1")
    e("v_lshrrev_b32 v9, 5, v1")
    e("v_xor_b32 v10, 32, v1")
    e("v_lshlrev_b32 v10, 2, v10")
    e("s_sub_u32 s35, 8, s4")
    e("s_max_i32 s35, s35, 0")
    e("s_lshl_b32 s38, s36, 5")
    e("v_add_u32 v11, s3, v8")
    e("v_lshlrev_b32 v11, 10, v11")
    e("v_lshl_add_u32 v11, v9, 4, v11")
    e("v_add_u32 v11, s38, v11")
    e("buffer_load_dwordx4 v[16:19], v11, s[28:31], 0 offen")
    e(f"v_add_u32 v12, {WS_K - 256*1024}, v11")
    e("v_and_b32 v13, 15, v1")
    e("s_lshl_b32 s39, s36, 4")
    e("v_add_u32 v13, s39, v13")
    e("v_lshlrev_b32 v13, 12, v13")
    e("v_lshl_add_u32 v13, v9, 3, v13")
    e("s_lshl_b32 s39, s3, 1")
    e(f"s_add_u32 s39, s39, {WS_VT - 512}")
    e("v_add_u32 v13, s39, v13")
    KF, VF, SP, TM, AC = 20, 56, 128, 200, 216
    for t in range(9):
        e(f"s_cmp_lt_i32 s35, {t+1}")
        e(f"s_cbranch_scc0 K2_L{t}")
        e(f"s_mov_b32 s40, {t*32*1024}")
        e(f"buffer_load_dwordx4 {vr(KF+4*t,4)}, v12, s[28:31], s40 offen")
        for cc in range(2):
            e(f"buffer_load_dwordx2 {vr(VF+8*t+4*cc,2)}, v13, s[28:31], 0 offen offset:{t*64+cc*32}")
            e(f"buffer_load_dwordx2 {vr(VF+8*t+4*cc+2,2)}, v13, s[28:31], 0 offen offset:{t*64+cc*32+16}")
        lab(f"K2_L{t}")
    e("v_lshlrev_b32 v14, 2, v9")
    e(f"v_mov_b32 v15, {NEG}")
    e("v_mov_b32 v3, v15")
    e("s_waitcnt vmcnt(0)")
    for t in range(9):
        e(f"s_cmp_lt_i32 s35, {t+1}")
        e(f"s_cbranch_scc0 K2_SK{t}")
        for i in range(16): e(f"v_mov_b32 v{TM+i}, 0")
        e("s_nop 1")
        e(f"v_mfma_f32_32x32x16_bf16 {vr(TM,16)}, {vr(KF+4*t,4)}, v[16:19], {vr(TM,16)}")
        e("s_nop 7"); e("s_nop 4")
        if t in (0, 8):
            for j in range(4):
                for i in range(4):
                    r = TM+4*j+i
                    e(f"v_add_u32 v4, {8*j+i}, v14")
                    e("v_cmp_gt_u32 vcc, v4, v8" if t == 0 else "v_cmp_le_u32 vcc, v4, v8")
                    e("s_nop 1")
                    e(f"v_cndmask_b32 v{r}, v15, v{r}, vcc")
        for i in range(8):
            e(f"v_cvt_pk_bf16_f32 v{SP+8*t+i}, v{TM+2*i}, v{TM+2*i+1}")
            e(f"v_max3_f32 v3, v3, v{TM+2*i}, v{TM+2*i+1}")
        e(f"s_branch K2_DN{t}")
        lab(f"K2_SK{t}")
        for i in range(8): e(f"v_mov_b32 v{SP+8*t+i}, 0xf149f149")
        lab(f"K2_DN{t}")
    rb("v3", "v3")
    e("ds_bpermute_b32 v4, v10, v3")
    e("s_waitcnt lgkmcnt(0)")
    e("v_max_f32 v3, v3, v4")
    e("v_mov_b32 v5, 0x3eb8aa3b")
    e("v_mul_f32 v3, v5, v3")
    e("v_mov_b32 v6, 0")
    e("v_mov_b32 v7, 0")
    for r in range(72):
        e(f"v_lshlrev_b32 v{TM}, 16, v{SP+r}")
        e(f"v_and_b32 v{TM+1}, 0xffff0000, v{SP+r}")
        e(f"v_fma_f32 v{TM}, v{TM}, v5, -v3")
        e(f"v_fma_f32 v{TM+1}, v{TM+1}, v5, -v3")
        e(f"v_exp_f32 v{TM}, v{TM}")
        e(f"v_exp_f32 v{TM+1}, v{TM+1}")
        e("s_nop 0")
        e(f"v_add_f32 v6, v6, v{TM}")
        e(f"v_add_f32 v7, v7, v{TM+1}")
        e(f"v_cvt_pk_bf16_f32 v{SP+r}, v{TM}, v{TM+1}")
    e("v_add_f32 v6, v6, v7")
    e("ds_bpermute_b32 v4, v10, v6")
    for i in range(16): e(f"v_mov_b32 v{AC+i}, 0")
    e("s_waitcnt lgkmcnt(0)")
    e("v_add_f32 v6, v6, v4")
    e("v_rcp_f32 v6, v6")
    for t in range(9):
        e(f"s_cmp_lt_i32 s35, {t+1}")
        e(f"s_cbranch_scc0 K2_SV{t}")
        for cc in range(2):
            e(f"v_mfma_f32_32x32x16_bf16 {vr(AC,16)}, {vr(VF+8*t+4*cc,4)}, {vr(SP+8*t+4*cc,4)}, {vr(AC,16)}")
        lab(f"K2_SV{t}")
    e("s_nop 7"); e("s_nop 7")
    for i in range(8): e(f"v_mul_f32 v{AC+i}, v{AC+i}, v6")
    for i in range(4): e(f"v_cvt_pk_bf16_f32 v{AC+i}, v{AC+2*i}, v{AC+2*i+1}")
    e("v_add_u32 v11, s3, v8")
    e("v_lshlrev_b32 v11, 10, v11")
    e("v_lshl_add_u32 v11, v9, 3, v11")
    e(f"s_add_u32 s38, s38, {WS_O}")
    e("v_add_u32 v11, s38, v11")
    e(f"buffer_store_dwordx2 {vr(AC,2)}, v11, s[28:31], 0 offen")
    e(f"buffer_store_dwordx2 {vr(AC+2,2)}, v11, s[28:31], 0 offen offset:16")
    lab("K2_END")
    e("s_endpgm")

def k3(L):
    e, lab, vr, srd, rb = mk(L)
    lab("k3_kernel")
    e("s_cmp_ge_u32 s2, 512")
    e("s_cbranch_scc1 K3_END")
    e("s_load_dwordx2 s[4:5], s[0:1], 0")
    e("s_load_dwordx2 s[10:11], s[0:1], 80")
    e("s_load_dwordx2 s[12:13], s[0:1], 96")
    e("v_and_b32 v1, 63, v0")
    e("v_lshrrev_b32 v2, 6, v0")
    e("s_nop 1")
    e("v_readfirstlane_b32 s32, v2")
    e("s_lshr_b32 s3, s2, 3")
    e("s_lshl_b32 s3, s3, 5")
    e("s_and_b32 s33, s2, 7")
    e("s_lshl_b32 s33, s33, 1")
    e("s_and_b32 s34, s32, 1")
    e("s_add_u32 s33, s33, s34")
    e("s_lshl_b32 s36, s33, 5")
    e("s_lshr_b32 s37, s32, 1")
    e("s_lshl_b32 s39, s37, 9")
    e("s_waitcnt lgkmcnt(0)")
    srd(16, 4, 2048*512*2); srd(24, 10, 2048*512*2); srd(28, 12, 0x10000000)
    e("v_and_b32 v8, 31, v1")
    e("v_lshrrev_b32 v9, 5, v1")
    e("s_and_b32 s43, s2, 7")
    e("s_lshl_b32 s43, s43, 16")
    e(f"s_add_u32 s43, s43, {WS_WOT}")
    e("s_lshl_b32 s44, s3, 10")
    e(f"s_add_u32 s44, s44, {WS_O}")
    e("v_lshlrev_b32 v11, 4, v0")
    e("v_lshlrev_b32 v12, 4, v1")
    e("v_mul_u32_u24 v17, 1040, v2")
    e("v_add_u32 v12, v12, v17")
    for i in range(24):
        e(f"s_add_u32 s45, {'s43' if i<16 else 's44'}, {(i%16)*4096}")
        e(f"buffer_load_dwordx4 {vr(64+4*i,4)}, v11, s[28:31], s45 offen")
    for i in range(24):
        e(f"s_waitcnt vmcnt({23-i})")
        if i % 12 == 0 and i: e(f"v_add_u32 v12, {12*4160}, v12")
        e(f"ds_write_b128 v12, {vr(64+4*i,4)} offset:{(i%12)*4160}")
    e("s_lshl_b32 s45, s34, 5")
    e("v_add_u32 v11, s45, v8")
    e("v_mul_u32_u24 v11, 1040, v11")
    e("v_lshl_add_u32 v11, v9, 4, v11")
    e("v_add_u32 v11, s39, v11")
    e("v_add_u32 v12, 64, v8")
    e("v_mul_u32_u24 v12, 1040, v12")
    e("v_lshl_add_u32 v12, v9, 4, v12")
    e("v_add_u32 v12, s39, v12")
    e("s_waitcnt lgkmcnt(0)")
    e("s_barrier")
    for kk in range(16):
        e(f"ds_read_b128 {vr(64+8*kk,4)}, v11 offset:{kk*32}")
        e(f"ds_read_b128 {vr(68+8*kk,4)}, v12 offset:{kk*32}")
    e("v_add_u32 v13, s3, v8")
    e("v_lshlrev_b32 v14, 2, v13")
    e(f"v_add_u32 v14, {WS_G}, v14")
    e("v_lshlrev_b32 v13, 10, v13")
    e("v_lshl_add_u32 v13, v9, 3, v13")
    e("s_lshl_b32 s38, s36, 1")
    e("v_add_u32 v13, s38, v13")
    e("v_lshl_add_u32 v15, v9, 2, s36")
    e("v_lshlrev_b32 v15, 12, v15")
    e("v_add_u32 v3, s3, v8")
    e("v_lshl_add_u32 v15, v3, 1, v15")
    e(f"v_add_u32 v15, {WS_YT}, v15")
    XB, YB = 192, 200
    e("s_cmp_eq_u32 s37, 0")
    e("s_cbranch_scc0 K3_NOEP")
    e("buffer_load_dword v4, v14, s[28:31], 0 offen")
    for j in range(4):
        e(f"buffer_load_dwordx2 {vr(XB+2*j,2)}, v13, s[16:19], 0 offen offset:{16*j}")
        for i in range(4):
            e(f"s_mov_b32 s41, {(8*j+i)*4096}")
            e(f"buffer_load_ushort v{YB+4*j+i}, v15, s[28:31], s41 offen")
    lab("K3_NOEP")
    for i in range(16): e(f"v_mov_b32 v{32+i}, 0")
    e("s_waitcnt lgkmcnt(0)")
    for kk in range(16):
        e(f"v_mfma_f32_32x32x16_bf16 v[32:47], {vr(64+8*kk,4)}, {vr(68+8*kk,4)}, v[32:47]")
    e("s_nop 7"); e("s_nop 7")
    e("s_barrier")
    e("v_lshlrev_b32 v16, 4, v1")
    e("s_lshl_b32 s42, s34, 12")
    e("v_add_u32 v16, s42, v16")
    e("s_cmp_eq_u32 s37, 0")
    e("s_cbranch_scc1 K3_H0")
    for j in range(4): e(f"ds_write_b128 v16, {vr(32+4*j,4)} offset:{1024*j}")
    e("s_waitcnt lgkmcnt(0)")
    e("s_barrier")
    e("s_endpgm")
    lab("K3_H0")
    e("s_barrier")
    for j in range(4): e(f"ds_read_b128 {vr(48+4*j,4)}, v16 offset:{1024*j}")
    e("s_waitcnt vmcnt(0) lgkmcnt(0)")
    for i in range(16): e(f"v_add_f32 v{32+i}, v{32+i}, v{48+i}")
    e("v_sub_f32 v5, 1.0, v4"); rb("v5","v5")
    for j in range(4):
        e(f"v_lshlrev_b32 v24, 16, v{XB+2*j}"); e(f"v_and_b32 v25, 0xffff0000, v{XB+2*j}")
        e(f"v_lshlrev_b32 v26, 16, v{XB+2*j+1}"); e(f"v_and_b32 v27, 0xffff0000, v{XB+2*j+1}")
        for i in range(4):
            e(f"v_lshlrev_b32 v{20+i}, 16, v{YB+4*j+i}")
            e(f"v_mul_f32 v{20+i}, v{20+i}, v{24+i}"); rb(f"v{20+i}", f"v{20+i}")
            e(f"v_mul_f32 v{20+i}, v4, v{20+i}"); rb(f"v{20+i}", f"v{20+i}")
            rb(f"v{24+i}", f"v{32+4*j+i}")
            e(f"v_mul_f32 v{24+i}, v5, v{24+i}"); rb(f"v{24+i}", f"v{24+i}")
            e(f"v_add_f32 v{20+i}, v{20+i}, v{24+i}")
        e(f"v_cvt_pk_bf16_f32 v{28+2*(j&1)}, v20, v21")
        e(f"v_cvt_pk_bf16_f32 v{29+2*(j&1)}, v22, v23")
        e(f"buffer_store_dwordx2 {vr(28+2*(j&1),2)}, v13, s[24:27], 0 offen offset:{16*j}")
    lab("K3_END")
    e("s_endpgm")
```

```python
import sys
NAME = "gated_mix__ssm_conv_h3__sliding_block__prompt"
L = []
def e(s): L.append("    " + s)
def lab(s): L.append(s + ":")
def c(s): L.append("    ; " + s)

WS_Q, WS_K, WS_VT, WS_YT, WS_WOT = 0, 2<<20, 4<<20, 6<<20, 8<<20
SRD3 = "0x00020000"

def srd(d, b, nbytes):
    e(f"s_mov_b32 s{d}, s{b}")
    e(f"s_and_b32 s{d+1}, s{b+1}, 0xffff")
    e(f"s_mov_b32 s{d+2}, {nbytes}")
    e(f"s_mov_b32 s{d+3}, {SRD3}")

def vr(a, n): return f"v[{a}:{a+n-1}]"

N_CONV, N_GEMM, N_WOT, N_GATE = 256, 384, 128, 128
K1_GRID = N_CONV + N_GEMM + N_WOT + N_GATE
WSTR = 144
CP_BYTES = 261*16
HC_BYTES = 8*CP_BYTES
XB_ZERO = 256*16
XB_BYTES = XB_ZERO + 256*16
CH_BYTES = HC_BYTES + XB_BYTES
HS_OFF = 2*CH_BYTES
HS_CH = (32+2048+32)*2
K1_LDS = max(512*WSTR, HS_OFF + 2*HS_CH)

def k1():
    lab(f"k1_kernel")
    e(f"s_cmp_ge_u32 s2, {K1_GRID}")
    e("s_cbranch_scc1 K1_END")
    e("s_load_dwordx4 s[4:7], s[0:1], 0")
    e("s_load_dwordx4 s[8:11], s[0:1], 16")
    e("s_load_dwordx4 s[12:15], s[0:1], 32")
    e("s_load_dwordx4 s[16:19], s[0:1], 56")
    e("s_load_dwordx2 s[20:21], s[0:1], 96")
    e("v_and_b32 v1, 63, v0")
    e("v_lshrrev_b32 v2, 6, v0")
    e("s_waitcnt lgkmcnt(0)")
    srd(24, 20, 0x10000000)
    e(f"s_cmp_lt_u32 s2, {N_CONV}")
    e("s_cbranch_scc1 K1_CONV")
    e(f"s_cmp_lt_u32 s2, {N_CONV+N_GEMM}")
    e("s_cbranch_scc1 K1_GEMM")
    e(f"s_cmp_lt_u32 s2, {N_CONV+N_GEMM+N_WOT}")
    e("s_cbranch_scc1 K1_WOT")
    e("s_load_dwordx2 s[40:41], s[0:1], 72")
    srd(28, 4, 2048*512*2)
    e("s_waitcnt lgkmcnt(0)")
    srd(32, 40, 1024)
    e(f"s_sub_u32 s3, s2, {N_CONV+N_GEMM+N_WOT}")
    e("s_lshl_b32 s3, s3, 4")
    e("v_lshrrev_b32 v6, 4, v0")
    e("v_add_u32 v6, s3, v6")
    e("v_and_b32 v7, 15, v0")
    e("v_lshlrev_b32 v8, 10, v6")
    e("v_lshl_add_u32 v8, v7, 6, v8")
    e("v_lshlrev_b32 v9, 6, v7")
    for i in range(4):
        e(f"buffer_load_dwordx4 {vr(80+4*i,4)}, v8, s[28:31], 0 offen offset:{16*i}")
        e(f"buffer_load_dwordx4 {vr(96+4*i,4)}, v9, s[32:35], 0 offen offset:{16*i}")
    e("s_waitcnt vmcnt(0)")
    e("v_mov_b32 v11, 0")
    for i in range(16):
        for hi in range(2):
            if hi: e(f"v_and_b32 v12, 0xffff0000, v{80+i}"); e(f"v_and_b32 v13, 0xffff0000, v{96+i}")
            else:  e(f"v_lshlrev_b32 v12, 16, v{80+i}"); e(f"v_lshlrev_b32 v13, 16, v{96+i}")
            e("v_mul_f32 v12, v12, v13")
            e("v_cvt_pk_bf16_f32 v12, v12, v12"); e("v_lshlrev_b32 v12, 16, v12")
            e("v_add_f32 v11, v11, v12")
    for x in (1,2,4,8):
        e(f"ds_swizzle_b32 v12, v11 offset:{(x<<10)|0x1f}")
        e("s_waitcnt lgkmcnt(0)")
        e("v_add_f32 v11, v11, v12")
    e("v_cvt_pk_bf16_f32 v11, v11, v11"); e("v_lshlrev_b32 v11, 16, v11")
    e("v_mul_f32 v11, 0xbfb8aa3b, v11")
    e("v_exp_f32 v11, v11")
    e("s_nop 0")
    e("v_add_f32 v11, 1.0, v11")
    e("v_rcp_f32 v11, v11")
    e("s_nop 0")
    e("v_cvt_pk_bf16_f32 v11, v11, v11"); e("v_lshlrev_b32 v11, 16, v11")
    e("v_lshlrev_b32 v12, 2, v6")
    e(f"v_add_u32 v12, {11<<20}, v12")
    e("buffer_store_dword v11, v12, s[24:27], 0 offen")
    e("s_endpgm")
    lab("K1_WOT")
    srd(28, 18, 512*512*2)
    e(f"s_sub_u32 s3, s2, {N_CONV+N_GEMM}")
    e("s_lshl_b32 s3, s3, 8")
    e("v_add_u32 v3, s3, v0")
    e("v_and_b32 v4, 511, v3")
    e("v_lshrrev_b32 v5, 9, v3")
    e("v_lshlrev_b32 v6, 13, v5")
    e("v_lshl_add_u32 v6, v4, 1, v6")
    for i in range(8):
        e(f"s_mov_b32 s70, {i*1024}")
        e(f"buffer_load_ushort v{8+i}, v6, s[28:31], s70 offen")
    e("s_waitcnt vmcnt(0)")
    for i in range(4):
        e(f"v_lshlrev_b32 v{9+2*i}, 16, v{9+2*i}")
        e(f"v_or_b32 v{16+i}, v{8+2*i}, v{9+2*i}")
    e("v_lshlrev_b32 v6, 10, v4")
    e("v_lshl_add_u32 v6, v5, 4, v6")
    e(f"v_add_u32 v6, {WS_WOT}, v6")
    e("buffer_store_dwordx4 v[16:19], v6, s[24:27], 0 offen")
    e("s_endpgm")
    lab("K1_GEMM")
    srd(28, 4, 2048*512*2)
    srd(32, 16, 512*1536*2)
    e(f"s_sub_u32 s3, s2, {N_CONV}")
    e("s_mul_i32 s36, s3, 2731")
    e("s_lshr_b32 s36, s36, 16")
    e("s_mul_i32 s37, s36, 24")
    e("s_sub_u32 s37, s3, s37")
    e("s_lshl_b32 s38, s37, 7")
    e("v_lshrrev_b32 v3, 3, v0")
    e("v_and_b32 v4, 7, v0")
    e("v_mul_u32_u24 v5, 3072, v3")
    e("v_lshl_add_u32 v5, v4, 4, v5")
    e(f"v_mul_u32_u24 v6, {WSTR}, v3")
    e("v_lshl_add_u32 v6, v4, 4, v6")
    for i in range(16):
        e(f"s_mov_b32 s39, {i*32*3072}")
        e(f"s_add_u32 s39, s39, s38")
        e(f"buffer_load_dwordx4 {vr(64+4*i,4)}, v5, s[32:35], s39 offen")
    e("s_lshl_b32 s40, s36, 7")
    e("v_lshlrev_b32 v7, 5, v2")
    e("v_add_u32 v7, s40, v7")
    e("v_and_b32 v8, 31, v1")
    e("v_add_u32 v8, v7, v8")
    e("v_lshlrev_b32 v8, 10, v8")
    e("v_lshrrev_b32 v9, 5, v1")
    e("v_lshl_add_u32 v8, v9, 4, v8")
    for kk in range(32):
        e(f"buffer_load_dwordx4 {vr(128+4*kk,4)}, v8, s[28:31], 0 offen offset:{kk*32}")
    for i in range(16):
        e(f"s_waitcnt vmcnt({32+15-i})")
        if i == 8: e(f"v_add_u32 v6, {8*32*WSTR}, v6")
        e(f"ds_write_b128 v6, {vr(64+4*i,4)} offset:{(i%8)*32*WSTR}")
    e("v_lshrrev_b32 v10, 4, v1")
    e("v_and_b32 v11, 15, v1")
    e("v_lshrrev_b32 v12, 1, v10")
    e("v_lshlrev_b32 v12, 3, v12")
    e("v_lshrrev_b32 v13, 2, v11")
    e("v_add_u32 v12, v12, v13")
    e(f"v_mul_u32_u24 v12, {WSTR}, v12")
    e("v_and_b32 v13, 1, v10")
    e("v_lshlrev_b32 v13, 5, v13")
    e("v_and_b32 v14, 3, v11")
    e("v_lshl_add_u32 v13, v14, 3, v13")
    e("v_add_u32 v12, v12, v13")
    e(f"v_add_u32 v13, {16*16*WSTR}, v12")
    for i in range(32):
        e(f"v_mov_b32 v{16+i}, 0")
    e("s_waitcnt vmcnt(0) lgkmcnt(0)")
    e("s_barrier")
    e("s_cmp_ge_u32 s37, 16")
    e("s_cbranch_scc1 K1_GEMM_V")
    def gemm_loop(swap):
        def rd(kk):
            base = 12 if kk < 16 else 13
            k2 = kk % 16
            for t in range(2):
                for r_ in range(2):
                    e(f"ds_read_b64_tr_b16 {vr(64+16*(kk%3)+8*t+2*r_,2)}, v{base} offset:{k2*16*WSTR+r_*4*WSTR+t*64}")
        rd(0); rd(1)
        for kk in range(32):
            if kk+2 < 32: rd(kk+2); e("s_waitcnt lgkmcnt(8)")
            elif kk+1 < 32: e("s_waitcnt lgkmcnt(4)")
            else: e("s_waitcnt lgkmcnt(0)")
            for t in range(2):
                W = vr(64+16*(kk%3)+8*t,4); X = vr(128+4*kk,4); D = vr(16+16*t,16)
                if swap: e(f"v_mfma_f32_32x32x16_bf16 {D}, {X}, {W}, {D}")
                else:    e(f"v_mfma_f32_32x32x16_bf16 {D}, {W}, {X}, {D}")
    gemm_loop(False)
    e("s_nop 7"); e("s_nop 7")
    e("s_lshr_b32 s41, s37, 3")
    e("s_lshl_b32 s41, s41, 21")
    e("s_and_b32 s42, s37, 7")
    e("s_lshl_b32 s42, s42, 7")
    e("s_add_u32 s41, s41, s42")
    e("v_and_b32 v8, 31, v1")
    e("v_add_u32 v8, v7, v8")
    e("v_lshlrev_b32 v8, 10, v8")
    e("v_lshl_add_u32 v8, v9, 3, v8")
    e("v_add_u32 v8, s41, v8")
    for t in range(2):
        for j in range(4):
            b = 16+16*t+4*j
            e(f"v_cvt_pk_bf16_f32 v{48+2*(j&1)}, v{b}, v{b+1}")
            e(f"v_cvt_pk_bf16_f32 v{49+2*(j&1)}, v{b+2}, v{b+3}")
            e(f"buffer_store_dwordx2 {vr(48+2*(j&1),2)}, v8, s[24:27], 0 offen offset:{t*64+j*16}")
    e("s_endpgm")
    lab("K1_GEMM_V")
    gemm_loop(True)
    e("s_nop 7"); e("s_nop 7")
    e("s_and_b32 s42, s37, 7")
    e("s_lshl_b32 s42, s42, 6")
    e("v_and_b32 v8, 31, v1")
    e("v_add_u32 v8, s42, v8")
    e("v_lshlrev_b32 v8, 12, v8")
    e("v_lshl_add_u32 v8, v7, 1, v8")
    e("v_lshl_add_u32 v8, v9, 3, v8")
    e(f"v_add_u32 v8, {WS_VT}, v8")
    for t in range(2):
        e(f"v_add_u32 v10, {t*32*4096}, v8")
        for j in range(4):
            b = 16+16*t+4*j
            e(f"v_cvt_pk_bf16_f32 v{48+2*(j&1)}, v{b}, v{b+1}")
            e(f"v_cvt_pk_bf16_f32 v{49+2*(j&1)}, v{b+2}, v{b+3}")
            e(f"buffer_store_dwordx2 {vr(48+2*(j&1),2)}, v10, s[24:27], 0 offen offset:{j*16}")
    e("s_endpgm")
    lab("K1_CONV")
    srd(28, 6, 2048*512*2)
    srd(32, 8, 2048*512*2)
    srd(36, 12, 512*2048*2)
    e("s_lshl_b32 s3, s2, 1")
    e("s_lshl_b32 s40, s3, 3")
    e("s_load_dwordx4 s[44:47], s[10:11], s40")
    e("s_lshl_b32 s41, s3, 1")
    e("s_load_dword s48, s[14:15], s41")
    e("v_lshlrev_b32 v3, 13, v0")
    e("s_lshl_b32 s42, s3, 1")
    e("v_add_u32 v3, s42, v3")
    for i in range(11):
        off = (i-3)*1024
        if off < 0:
            e(f"v_add_u32 v4, {off}, v3")
            e(f"buffer_load_dword v{16+i}, v4, s[28:31], 0 offen")
        else:
            e(f"s_mov_b32 s70, {off}")
            e(f"buffer_load_dword v{16+i}, v3, s[28:31], s70 offen")
    for i in range(8):
        e(f"s_mov_b32 s70, {i*1024}")
        e(f"buffer_load_dword v{32+i}, v3, s[32:35], s70 offen")
    e("s_lshl_b32 s43, s3, 12")
    e("v_lshlrev_b32 v5, 4, v0")
    e("buffer_load_dwordx4 v[40:43], v5, s[36:39], s43 offen")
    e("s_add_u32 s43, s43, 4096")
    e("buffer_load_dwordx4 v[44:47], v5, s[36:39], s43 offen")
    e("v_mov_b32 v48, 0"); e("v_mov_b32 v49, 0"); e("v_mov_b32 v50, 0"); e("v_mov_b32 v51, 0")
    e(f"ds_write_b128 v5, v[48:51] offset:{HC_BYTES}")
    e(f"v_add_u32 v6, {CH_BYTES+HC_BYTES}, v5")
    e("ds_write_b128 v6, v[48:51]")
    e("v_cmp_gt_u32 vcc, 4, v0")
    e("s_and_saveexec_b64 s[50:51], vcc")
    e(f"v_add_u32 v6, {HS_OFF}, v5")
    e("ds_write_b128 v6, v[48:51]")
    e(f"ds_write_b128 v6, v[48:51] offset:{HS_CH}")
    e(f"ds_write_b128 v6, v[48:51] offset:{64+4096}")
    e(f"ds_write_b128 v6, v[48:51] offset:{HS_CH+64+4096}")
    e("s_mov_b64 exec, s[50:51]")
    e("s_waitcnt vmcnt(0) lgkmcnt(0)")
    e(f"v_add_u32 v6, {HS_OFF+64}, v5")
    e("ds_write_b128 v6, v[40:43]")
    e(f"ds_write_b128 v6, v[44:47] offset:{HS_CH}")
    for ch in range(2):
        for q in range(4):
            sreg = 44 + 2*ch + (q>>1)
            if q & 1: e(f"s_and_b32 s{52+4*ch+q}, s{sreg}, 0xffff0000")
            else:     e(f"s_lshl_b32 s{52+4*ch+q}, s{sreg}, 16")
    def rb(dst, src):
        e(f"v_cvt_pk_bf16_f32 {dst}, {src}, {src}")
        e(f"v_lshlrev_b32 {dst}, 16, {dst}")
    for ch in range(2):
        for i in range(11):
            if ch: e(f"v_and_b32 v{64+i}, 0xffff0000, v{16+i}")
            else:  e(f"v_lshlrev_b32 v{64+i}, 16, v{16+i}")
        for i in range(8):
            if ch: e(f"v_and_b32 v{76+i}, 0xffff0000, v{32+i}")
            else:  e(f"v_lshlrev_b32 v{76+i}, 16, v{32+i}")
        for i in range(8):
            e(f"v_mul_f32 v84, s{52+4*ch+3}, v{64+i}");   rb("v84","v84")
            e(f"v_mul_f32 v85, s{52+4*ch+2}, v{64+i+1}"); rb("v85","v85")
            e("v_add_f32 v84, v84, v85");                 rb("v84","v84")
            e(f"v_mul_f32 v85, s{52+4*ch+1}, v{64+i+2}"); rb("v85","v85")
            e("v_add_f32 v84, v84, v85");                 rb("v84","v84")
            e(f"v_mul_f32 v85, s{52+4*ch+0}, v{64+i+3}"); rb("v85","v85")
            e("v_add_f32 v84, v84, v85");                 rb("v84","v84")
            e(f"v_mul_f32 v{88+i}, v84, v{76+i}")
        for j in range(4):
            e(f"v_cvt_pk_bf16_f32 v{96+j}, v{88+7-2*j}, v{88+6-2*j}")
        e(f"v_add_u32 v6, {ch*CH_BYTES+HC_BYTES+XB_ZERO}, v5")
        e("ds_write_b128 v6, v[96:99]")
    e("s_waitcnt lgkmcnt(0)")
    e("s_barrier")
    NIT = 2*8*261
    for it in range((NIT+255)//256):
        e(f"v_add_u32 v7, {it*256}, v0")
        e(f"v_cmp_gt_u32 vcc, {NIT}, v7")
        e("s_and_saveexec_b64 s[50:51], vcc")
        e("v_mul_u32_u24 v8, 16071, v7")
        e("v_lshrrev_b32 v8, 22, v8")
        e("v_mul_u32_u24 v9, 261, v8")
        e("v_sub_u32 v9, v7, v9")
        e("v_lshrrev_b32 v10, 3, v8")
        e("v_and_b32 v11, 7, v8")
        e(f"v_mul_u32_u24 v12, {HS_CH}, v10")
        e("v_lshl_add_u32 v12, v9, 4, v12")
        e("v_lshrrev_b32 v13, 1, v11")
        e("v_lshl_add_u32 v12, v13, 2, v12")
        e(f"v_add_u32 v12, {HS_OFF}, v12")
        e("ds_read2_b32 v[20:21], v12 offset0:0 offset1:1")
        e("ds_read2_b32 v[22:23], v12 offset0:2 offset1:3")
        e("ds_read_b32 v24, v12 offset:16")
        e("v_and_b32 v13, 1, v11")
        e("v_lshlrev_b32 v13, 1, v13")
        e(f"v_mul_u32_u24 v14, {CH_BYTES}, v10")
        e(f"v_mul_u32_u24 v15, {CP_BYTES}, v11")
        e("v_add_u32 v14, v14, v15")
        e("v_lshl_add_u32 v14, v9, 4, v14")
        e("s_waitcnt lgkmcnt(0)")
        for i in range(4):
            e(f"v_alignbyte_b32 v{28+i}, v{21+i}, v{20+i}, v13")
        e("ds_write_b128 v14, v[28:31]")
        e("s_mov_b64 exec, s[50:51]")
    e("s_waitcnt lgkmcnt(0)")
    e("s_barrier")
    e("v_readfirstlane_b32 s60, v2")
    e("s_nop 3")
    e("s_lshr_b32 s61, s60, 1")
    e("s_and_b32 s62, s60, 1")
    e(f"s_mul_i32 s63, s61, {CH_BYTES}")
    e("v_and_b32 v8, 31, v1")
    e("v_lshrrev_b32 v9, 5, v1")
    e("v_add_u32 v10, 1, v8")
    e("v_and_b32 v10, 7, v10")
    e("v_add_u32 v11, 25, v8")
    e("v_sub_u32 v11, v11, v10")
    e("v_lshrrev_b32 v11, 3, v11")
    e("v_sub_u32 v11, v11, v9")
    e(f"v_mul_u32_u24 v12, {CP_BYTES}, v10")
    e("v_lshl_add_u32 v12, v11, 4, v12")
    e("v_add_u32 v12, s63, v12")
    e("v_subrev_u32 v12, 32, v12")
    e("s_lshl_b32 s64, s62, 5")
    e("v_add_u32 v13, s64, v8")
    e("v_lshlrev_b32 v13, 2, v13")
    e("v_add_u32 v13, v13, v9")
    e("v_lshlrev_b32 v13, 4, v13")
    e(f"s_add_u32 s65, s63, {HC_BYTES+XB_ZERO}")
    e("v_add_u32 v13, s65, v13")
    for i in range(16): e(f"v_mov_b32 v{32+i}, 0")
    e("s_lshl_b32 s66, s62, 5")
    e("s_add_u32 s66, s66, 32")
    e("s_mov_b32 s67, 0")
    for b_ in (16, 64):
        e(f"ds_read_b128 v[{b_}:{b_+3}], v12 offset:32")
        e(f"ds_read_b128 v[{b_+4}:{b_+7}], v13")
        e(f"ds_read_b128 v[{b_+8}:{b_+11}], v12")
        e(f"ds_read_b128 v[{b_+12}:{b_+15}], v13 offset:32")
        e("v_add_u32 v12, 64, v12")
        e("v_subrev_u32 v13, 64, v13")
    lab("K1_CONV_LOOP")
    for b_ in (16, 64):
        e("s_waitcnt lgkmcnt(4)")
        e(f"v_mfma_f32_32x32x16_bf16 v[32:47], v[{b_}:{b_+3}], v[{b_+4}:{b_+7}], v[32:47]")
        e(f"v_mfma_f32_32x32x16_bf16 v[32:47], v[{b_+8}:{b_+11}], v[{b_+12}:{b_+15}], v[32:47]")
        e(f"ds_read_b128 v[{b_}:{b_+3}], v12 offset:32")
        e(f"ds_read_b128 v[{b_+4}:{b_+7}], v13")
        e(f"ds_read_b128 v[{b_+8}:{b_+11}], v12")
        e(f"ds_read_b128 v[{b_+12}:{b_+15}], v13 offset:32")
        e("v_add_u32 v12, 64, v12")
        e("v_subrev_u32 v13, 64, v13")
    e("s_add_u32 s67, s67, 2")
    e("s_cmp_lt_u32 s67, s66")
    e("s_cbranch_scc1 K1_CONV_LOOP")
    e("s_waitcnt lgkmcnt(0)")
    e("s_nop 7"); e("s_nop 7")
    e("s_lshl_b32 s68, s61, 4")
    e("s_lshr_b32 s68, s48, s68")
    e("s_lshl_b32 s68, s68, 16")
    e("v_add_u32 v13, s64, v8")
    e("v_lshlrev_b32 v14, 6, v13")
    e("v_add_u32 v14, s65, v14")
    e("v_sub_u32 v15, 1, v9")
    e("v_lshl_add_u32 v14, v15, 3, v14")
    for j in range(4):
        e(f"ds_read_b64 v[{16+2*j}:{17+2*j}], v14 offset:{16*j}")
    e("s_add_u32 s69, s3, s61")
    e("s_lshl_b32 s69, s69, 12")
    e(f"s_add_u32 s69, s69, {WS_YT}")
    e("v_lshlrev_b32 v15, 6, v13")
    e("v_lshl_add_u32 v15, v9, 3, v15")
    e("v_add_u32 v15, s69, v15")
    e("s_waitcnt lgkmcnt(0)")
    for j in range(4):
        a, b = 16+2*j, 17+2*j
        e(f"v_and_b32 v48, 0xffff0000, v{b}")
        e(f"v_lshlrev_b32 v49, 16, v{b}")
        e(f"v_and_b32 v50, 0xffff0000, v{a}")
        e(f"v_lshlrev_b32 v51, 16, v{a}")
        for i in range(4):
            e(f"v_mul_f32 v{48+i}, s68, v{48+i}"); rb(f"v{48+i}", f"v{48+i}")
            rb(f"v{52+i}", f"v{32+4*j+i}")
            e(f"v_add_f32 v{48+i}, v{48+i}, v{52+i}")
        e("v_cvt_pk_bf16_f32 v56, v48, v49")
        e("v_cvt_pk_bf16_f32 v57, v50, v51")
        e(f"buffer_store_dwordx2 v[56:57], v15, s[24:27], 0 offen offset:{16*j}")
    lab("K1_END")
    e("s_endpgm")

def desc(name, vg=256):
    return f""".amdhsa_kernel {name}
  .amdhsa_next_free_vgpr {vg}
  .amdhsa_next_free_sgpr 102
  .amdhsa_accum_offset {vg}
  .amdhsa_group_segment_fixed_size 0
  .amdhsa_kernarg_size 104
  .amdhsa_user_sgpr_count 2
  .amdhsa_user_sgpr_kernarg_segment_ptr 1
  .amdhsa_system_sgpr_workgroup_id_x 1
.end_amdhsa_kernel"""

if __name__ == "__main__":
    import k2gen
    hdr = [f"; @launch kernel=k1_kernel grid=({K1_GRID},1,1) block=(256,1,1) lds={K1_LDS}",
           f"; @launch kernel=k2_kernel grid=(512,1,1) block=(256,1,1) lds=0",
           f"; @launch kernel=k3_kernel grid=(512,1,1) block=(256,1,1) lds=99840",
           '.amdgcn_target "amdgcn-amd-amdhsa--gfx950"', ".text", ".globl k1_kernel", ".p2align 8",
           ".type k1_kernel,@function"]
    k1()
    L.append(".globl k2_kernel"); L.append(".p2align 8"); L.append(".type k2_kernel,@function")
    k2gen.k2(L)
    L.append(".globl k3_kernel"); L.append(".p2align 8"); L.append(".type k3_kernel,@function")
    k2gen.k3(L)
    out = "\n".join(hdr + L) + "\n.section .rodata,\"a\"\n.p2align 6\n" + desc("k1_kernel") + "\n.p2align 6\n" + desc("k2_kernel") + "\n.p2align 6\n" + desc("k3_kernel") + "\n"
    open(f"cdna_kernels/{NAME}.s", "w").write(out)
```

```python
WS_Q, WS_K, WS_VT, WS_YT, WS_WOT = 0, 2<<20, 4<<20, 6<<20, 8<<20
WS_O, WS_G, WS_KV = 9<<20, 11<<20, 12<<20
def mk(L):
    def e(s): L.append("    " + s)
    def lab(s): L.append(s + ":")
    def vr(a, n): return f"v[{a}:{a+n-1}]"
    def srd(d, b, nbytes):
        e(f"s_mov_b32 s{d}, s{b}"); e(f"s_and_b32 s{d+1}, s{b+1}, 0xffff")
        e(f"s_mov_b32 s{d+2}, {nbytes}"); e(f"s_mov_b32 s{d+3}, 0x00020000")
    def rb(dst, src):
        e(f"v_cvt_pk_bf16_f32 {dst}, {src}, {src}")
        e(f"v_lshlrev_b32 {dst}, 16, {dst}")
    return e, lab, vr, srd, rb
```

```python
from common import *
N_GEMM, N_KV, N_WOT, N_GATE = 192, 256, 128, 128
K1_GRID = N_GEMM + N_KV + N_WOT + N_GATE
XSTR, WSTR = 272, 272
XOFF, WOFF = 0, 128*XSTR
K1_LDS = WOFF + 128*WSTR
def k1(L):
    e, lab, vr, srd, rb = mk(L)
    lab("k1_kernel")
    e(f"s_cmp_ge_u32 s2, {K1_GRID}")
    e("s_cbranch_scc1 K1_END")
    e("s_load_dwordx4 s[4:7], s[0:1], 0")
    e("s_load_dwordx4 s[8:11], s[0:1], 16")
    e("s_load_dwordx4 s[16:19], s[0:1], 56")
    e("s_load_dwordx2 s[20:21], s[0:1], 96")
    e("s_load_dwordx2 s[22:23], s[0:1], 72")
    e("v_and_b32 v1, 63, v0")
    e("v_lshrrev_b32 v2, 6, v0")
    e("s_waitcnt lgkmcnt(0)")
    srd(24, 20, 0x10000000)
    e(f"s_cmp_lt_u32 s2, {N_GEMM}")
    e("s_cbranch_scc1 K1_GEMM")
    e(f"s_cmp_lt_u32 s2, {N_GEMM+N_KV}")
    e("s_cbranch_scc1 K1_KV")
    e(f"s_cmp_lt_u32 s2, {N_GEMM+N_KV+N_WOT}")
    e("s_cbranch_scc1 K1_WOT")
    srd(28, 4, 2048*512*2); srd(32, 22, 1024)
    e(f"s_sub_u32 s3, s2, {N_GEMM+N_KV+N_WOT}")
    e("s_lshl_b32 s3, s3, 4")
    e("v_lshrrev_b32 v6, 4, v0")
    e("v_add_u32 v6, s3, v6")
    e("v_and_b32 v7, 15, v0")
    e("v_lshlrev_b32 v8, 10, v6")
    e("v_lshl_add_u32 v8, v7, 4, v8")
    e("v_lshlrev_b32 v9, 4, v7")
    for i in range(4):
        e(f"buffer_load_dwordx4 {vr(80+4*i,4)}, v8, s[28:31], 0 offen offset:{256*i}")
        e(f"buffer_load_dwordx4 {vr(96+4*i,4)}, v9, s[32:35], 0 offen offset:{256*i}")
    e("s_waitcnt vmcnt(0)")
    e("v_mov_b32 v11, 0")
    for i in range(16):
        for hi in range(2):
            if hi: e(f"v_and_b32 v12, 0xffff0000, v{80+i}"); e(f"v_and_b32 v13, 0xffff0000, v{96+i}")
            else:  e(f"v_lshlrev_b32 v12, 16, v{80+i}"); e(f"v_lshlrev_b32 v13, 16, v{96+i}")
            e("v_mul_f32 v12, v12, v13"); rb("v12","v12")
            e("v_add_f32 v11, v11, v12")
    for x in (1,2,4,8):
        e(f"ds_swizzle_b32 v12, v11 offset:{(x<<10)|0x1f}")
        e("s_waitcnt lgkmcnt(0)")
        e("v_add_f32 v11, v11, v12")
    rb("v11","v11")
    e("v_mul_f32 v11, 0xbfb8aa3b, v11")
    e("v_exp_f32 v11, v11"); e("s_nop 0")
    e("v_add_f32 v11, 1.0, v11")
    e("v_rcp_f32 v11, v11"); e("s_nop 0")
    rb("v11","v11")
    e("v_lshlrev_b32 v12, 2, v6")
    e(f"v_add_u32 v12, {WS_G}, v12")
    e("buffer_store_dword v11, v12, s[24:27], 0 offen")
    e("s_endpgm")
    lab("K1_WOT")
    srd(28, 18, 512*512*2)
    e(f"s_sub_u32 s3, s2, {N_GEMM+N_KV}")
    e("s_lshl_b32 s3, s3, 8")
    e("v_add_u32 v3, s3, v0")
    e("v_and_b32 v4, 511, v3")
    e("v_lshrrev_b32 v5, 9, v3")
    e("v_lshlrev_b32 v6, 13, v5")
    e("v_lshl_add_u32 v6, v4, 1, v6")
    for i in range(8):
        e(f"s_mov_b32 s70, {i*1024}")
        e(f"buffer_load_ushort v{8+i}, v6, s[28:31], s70 offen")
    e("s_waitcnt vmcnt(0)")
    for i in range(4):
        e(f"v_lshlrev_b32 v{9+2*i}, 16, v{9+2*i}")
        e(f"v_or_b32 v{16+i}, v{8+2*i}, v{9+2*i}")
    e("v_lshlrev_b32 v6, 10, v4")
    e("v_lshl_add_u32 v6, v5, 4, v6")
    e(f"v_add_u32 v6, {WS_WOT}, v6")
    e("buffer_store_dwordx4 v[16:19], v6, s[24:27], 0 offen")
    e("s_endpgm")
    lab("K1_KV")
    srd(28, 6, 2048*512*2); srd(32, 8, 2048*512*2); srd(36, 10, 4096)
    e(f"s_sub_u32 s3, s2, {N_GEMM}")
    e("s_lshr_b32 s40, s3, 3")
    e("s_lshl_b32 s40, s40, 6")
    e("s_and_b32 s41, s3, 7")
    e("s_lshl_b32 s41, s41, 6")
    e("v_and_b32 v3, 7, v0")
    e("v_lshrrev_b32 v4, 3, v0")
    e("v_add_u32 v5, s40, v4")
    e("v_lshlrev_b32 v5, 10, v5")
    e("v_lshl_add_u32 v5, v3, 4, v5")
    e("s_lshl_b32 s42, s41, 1")
    e("v_add_u32 v5, s42, v5")
    for rr in range(2):
        for t in range(4):
            e(f"v_add_u32 v6, {(rr*32+t-3)*1024}, v5")
            e(f"buffer_load_dwordx4 {vr(16+16*rr+4*t,4)}, v6, s[28:31], 0 offen")
        e(f"s_mov_b32 s70, {rr*32*1024}")
        e(f"buffer_load_dwordx4 {vr(48+4*rr,4)}, v5, s[32:35], s70 offen")
    e("v_add_u32 v6, s41, v3")
    e("v_lshlrev_b32 v6, 3, v3")
    e("v_add_u32 v6, s41, v6")
    e("v_lshlrev_b32 v6, 3, v6")
    for i in range(4):
        e(f"buffer_load_dwordx4 {vr(56+4*i,4)}, v6, s[36:39], 0 offen offset:{16*i}")
    e("s_waitcnt vmcnt(0)")
    e("v_and_b32 v7, 7, v4")
    e("v_sub_u32 v7, 7, v7")
    e("v_and_b32 v8, 0x38, v4")
    e("v_add_u32 v7, v7, v8")
    e("v_lshlrev_b32 v7, 1, v7")
    e("v_mul_u32_u24 v8, 1152, v3")
    e("v_add_u32 v7, v7, v8")
    for rr in range(2):
        for c_ in range(8):
            d, hi = c_>>1, c_&1
            def un(dst, src):
                if hi: e(f"v_and_b32 {dst}, 0xffff0000, {src}")
                else:  e(f"v_lshlrev_b32 {dst}, 16, {src}")
            w0, w1 = 56+2*c_, 57+2*c_
            e(f"v_lshlrev_b32 v80, 16, v{w0}"); e(f"v_and_b32 v81, 0xffff0000, v{w0}")
            e(f"v_lshlrev_b32 v82, 16, v{w1}"); e(f"v_and_b32 v83, 0xffff0000, v{w1}")
            un("v84", f"v{16+16*rr+0+d}"); e("v_mul_f32 v84, v83, v84"); rb("v84","v84")
            un("v85", f"v{16+16*rr+4+d}"); e("v_mul_f32 v85, v82, v85"); rb("v85","v85")
            e("v_add_f32 v84, v84, v85"); rb("v84","v84")
            un("v85", f"v{16+16*rr+8+d}"); e("v_mul_f32 v85, v81, v85"); rb("v85","v85")
            e("v_add_f32 v84, v84, v85"); rb("v84","v84")
            un("v85", f"v{16+16*rr+12+d}"); e("v_mul_f32 v85, v80, v85"); rb("v85","v85")
            e("v_add_f32 v84, v84, v85"); rb("v84","v84")
            un("v85", f"v{48+4*rr+d}"); e("v_mul_f32 v84, v84, v85")
            e("v_cvt_pk_bf16_f32 v84, v84, v84")
            e(f"ds_write_b16 v7, v84 offset:{c_*144+rr*64}")
    e("s_waitcnt lgkmcnt(0)")
    e("s_barrier")
    for i in range(2):
        e(f"v_add_u32 v8, {i*256}, v0")
        e("v_lshrrev_b32 v9, 3, v8")
        e("v_and_b32 v10, 7, v8")
        e("v_mul_u32_u24 v11, 144, v9")
        e("v_lshl_add_u32 v11, v10, 4, v11")
        e(f"ds_read_b128 {vr(16+4*i,4)}, v11")
        e("v_add_u32 v9, s41, v9")
        e("v_lshlrev_b32 v9, 12, v9")
        e("v_lshl_add_u32 v9, v10, 4, v9")
        e("s_lshl_b32 s42, s40, 1")
        e(f"s_add_u32 s42, s42, {WS_KV}")
        e(f"v_add_u32 v{12+i}, s42, v9")
    e("s_waitcnt lgkmcnt(0)")
    for i in range(2):
        e(f"buffer_store_dwordx4 {vr(16+4*i,4)}, v{12+i}, s[24:27], 0 offen")
    e("s_endpgm")
    lab("K1_GEMM")
    srd(28, 4, 2048*512*2); srd(32, 16, 512*1536*2)
    e("s_mul_i32 s36, s2, 5462")
    e("s_lshr_b32 s36, s36, 16")
    e("s_mul_i32 s37, s36, 12")
    e("s_sub_u32 s37, s2, s37")
    e("s_lshl_b32 s38, s37, 8")
    e("s_lshl_b32 s39, s36, 17")
    e("v_lshrrev_b32 v3, 4, v0")
    e("v_and_b32 v4, 15, v0")
    e("v_lshlrev_b32 v5, 10, v3")
    e("v_lshl_add_u32 v5, v4, 4, v5")
    e("v_mul_u32_u24 v6, 3072, v3")
    e("v_lshl_add_u32 v6, v4, 4, v6")
    e(f"v_mul_u32_u24 v7, {XSTR}, v3")
    e("v_lshl_add_u32 v7, v4, 4, v7")
    def gload(ch):
        for i in range(8):
            e(f"s_add_u32 s40, s39, {i*16*1024 + ch*256}")
            e(f"buffer_load_dwordx4 {vr(96+4*i,4)}, v5, s[28:31], s40 offen")
        for i in range(8):
            e(f"s_add_u32 s40, s38, {(ch*128+i*16)*3072}")
            e(f"buffer_load_dwordx4 {vr(128+4*i,4)}, v6, s[32:35], s40 offen")
    gload(0)
    e("v_and_b32 v8, 31, v1"); e("v_lshrrev_b32 v9, 5, v1")
    e("v_lshrrev_b32 v10, 1, v2")
    e("v_and_b32 v11, 1, v2")
    e("v_lshl_add_u32 v12, v10, 6, v8")
    e(f"v_mul_u32_u24 v12, {XSTR}, v12")
    e("v_lshl_add_u32 v12, v9, 4, v12")
    e("v_lshrrev_b32 v13, 4, v1"); e("v_and_b32 v14, 15, v1")
    e("v_lshrrev_b32 v15, 1, v13"); e("v_lshlrev_b32 v15, 3, v15")
    e("v_lshrrev_b32 v16, 2, v14"); e("v_add_u32 v15, v15, v16")
    e(f"v_mul_u32_u24 v15, {WSTR}, v15")
    e("v_and_b32 v16, 1, v13"); e("v_lshlrev_b32 v16, 5, v16")
    e("v_and_b32 v17, 3, v14"); e("v_lshl_add_u32 v16, v17, 3, v16")
    e("v_add_u32 v15, v15, v16")
    e("v_lshl_add_u32 v15, v11, 7, v15")
    e(f"v_add_u32 v15, {WOFF}, v15")
    for i in range(64): e(f"v_mov_b32 v{160+i}, 0")
    e("s_cmp_ge_u32 s37, 8")
    e("s_cselect_b32 s41, 1, 0")
    def body(swap):
        for ch in range(4):
            for i in range(16):
                e(f"s_waitcnt vmcnt({15-i})")
                off = (i%8)*16*XSTR + (WOFF if i>=8 else 0)
                e(f"ds_write_b128 v7, {vr(96+4*i,4)} offset:{off}")
            e("s_waitcnt lgkmcnt(0)")
            e("s_barrier")
            if ch < 3: gload(ch+1)
            def rd(kk):
                b = 32+ 16*(kk%2)
                e(f"ds_read_b128 {vr(b,4)}, v12 offset:{kk*32}")
                e(f"ds_read_b128 {vr(b+4,4)}, v12 offset:{kk*32+32*XSTR}")
                for t in range(2):
                    for r_ in range(2):
                        e(f"ds_read_b64_tr_b16 {vr(b+8+4*t+2*r_,2)}, v15 offset:{kk*16*WSTR+r_*4*WSTR+t*64}")
            rd(0)
            for kk in range(8):
                if kk < 7: rd(kk+1); e("s_waitcnt lgkmcnt(6)")
                else: e("s_waitcnt lgkmcnt(0)")
                b = 32+16*(kk%2)
                for a in range(2):
                    for t in range(2):
                        X = vr(b+4*a,4); W = vr(b+8+4*t,4); D = vr(160+32*a+16*t,16)
                        if swap: e(f"v_mfma_f32_32x32x16_bf16 {D}, {X}, {W}, {D}")
                        else:    e(f"v_mfma_f32_32x32x16_bf16 {D}, {W}, {X}, {D}")
            if ch < 3: e("s_barrier")
        e("s_nop 7"); e("s_nop 7")
    e("s_cbranch_scc1 K1_GEMM_V")
    body(False)
    e("s_lshr_b32 s42, s37, 2")
    e("s_lshl_b32 s42, s42, 21")
    e("s_and_b32 s43, s37, 3")
    e("s_lshl_b32 s43, s43, 19")
    e("s_add_u32 s42, s42, s43")
    e("s_lshl_b32 s43, s36, 12")
    e("s_add_u32 s42, s42, s43")
    e("v_lshl_add_u32 v12, v10, 6, v8")
    e("v_lshlrev_b32 v12, 5, v12")
    e("v_lshl_add_u32 v12, v9, 3, v12")
    e("v_lshl_add_u32 v12, v11, 18, v12")
    e("v_add_u32 v12, s42, v12")
    for a in range(2):
        for t in range(2):
            for j in range(4):
                b = 160+32*a+16*t+4*j
                e(f"v_cvt_pk_bf16_f32 v{48+2*(j&1)}, v{b}, v{b+1}")
                e(f"v_cvt_pk_bf16_f32 v{49+2*(j&1)}, v{b+2}, v{b+3}")
                e(f"s_mov_b32 s43, {(2*t+(j>>1))*65536}")
                e(f"buffer_store_dwordx2 {vr(48+2*(j&1),2)}, v12, s[24:27], s43 offen offset:{a*1024+(j&1)*16}")
    e("s_endpgm")
    lab("K1_GEMM_V")
    body(True)
    e("s_sub_u32 s42, s37, 8")
    e("s_lshl_b32 s42, s42, 19")
    e(f"s_add_u32 s42, s42, {WS_VT}")
    e("s_lshl_b32 s43, s36, 12")
    e("s_add_u32 s42, s42, s43")
    e("v_lshrrev_b32 v12, 4, v8")
    e("v_lshlrev_b32 v12, 16, v12")
    e("v_and_b32 v13, 15, v8")
    e("v_lshl_add_u32 v12, v13, 6, v12")
    e("v_lshl_add_u32 v12, v9, 3, v12")
    e("v_lshl_add_u32 v12, v11, 18, v12")
    e("v_lshl_add_u32 v12, v10, 11, v12")
    e("v_add_u32 v12, s42, v12")
    for a in range(2):
        for t in range(2):
            for j in range(4):
                b = 160+32*a+16*t+4*j
                e(f"v_cvt_pk_bf16_f32 v{48+2*(j&1)}, v{b}, v{b+1}")
                e(f"v_cvt_pk_bf16_f32 v{49+2*(j&1)}, v{b+2}, v{b+3}")
                e(f"s_mov_b32 s43, {t*131072}")
                e(f"buffer_store_dwordx2 {vr(48+2*(j&1),2)}, v12, s[24:27], s43 offen offset:{a*1024+j*16}")
    lab("K1_END")
    e("s_endpgm")
```

```python
from common import *
N_CONV, N_ATT = 256, 512
K2_GRID = N_CONV + N_ATT
CPB = 4176
HCB = 4*CPB
XZ = 2048
XBB = XZ + 4096
CHB = HCB + XBB
HS_OFF = 2*CHB
HS_CH = (32+2048+32)*2
K2_LDS = HS_OFF + 2*HS_CH
NEG = "0xf149f2ca"
def k2(L):
    e, lab, vr, srd, rb = mk(L)
    lab("k2_kernel")
    e(f"s_cmp_ge_u32 s2, {K2_GRID}")
    e("s_cbranch_scc1 K2_END")
    e("s_load_dwordx2 s[12:13], s[0:1], 96")
    e("s_load_dwordx4 s[16:19], s[0:1], 32")
    e("v_and_b32 v1, 63, v0")
    e("v_lshrrev_b32 v2, 6, v0")
    e("s_nop 1")
    e("v_readfirstlane_b32 s32, v2")
    e("s_waitcnt lgkmcnt(0)")
    srd(28, 12, 0x10000000)
    e(f"s_cmp_lt_u32 s2, {N_CONV}")
    import os
    only = os.environ.get("K2ONLY","")
    e("s_cbranch_scc1 " + ("K2_END" if only=="att" else "K2_CONV"))
    if only=="conv": e("s_branch K2_END")
    e(f"s_sub_u32 s6, s2, {N_CONV}")
    e("s_lshr_b32 s4, s6, 3")
    e("s_and_b32 s5, s6, 7")
    e("s_lshl_b32 s3, s4, 5")
    e("s_lshl_b32 s36, s5, 2")
    e("s_add_u32 s36, s36, s32")
    e("v_and_b32 v8, 31, v1")
    e("v_lshrrev_b32 v9, 5, v1")
    e("v_xor_b32 v10, 32, v1")
    e("v_lshlrev_b32 v10, 2, v10")
    e("s_sub_u32 s35, 8, s4")
    e("s_max_i32 s35, s35, 0")
    e("s_lshl_b32 s38, s36, 16")
    e("s_lshl_b32 s39, s3, 5")
    e("s_add_u32 s39, s39, s38")
    e("v_lshlrev_b32 v11, 5, v8")
    e("v_lshl_add_u32 v11, v9, 4, v11")
    e("v_add_u32 v11, s39, v11")
    e("buffer_load_dwordx4 v[16:19], v11, s[28:31], 0 offen")
    e(f"v_add_u32 v12, {WS_K - 256*32}, v11")
    e("v_and_b32 v13, 15, v1")
    e("v_lshlrev_b32 v13, 6, v13")
    e("v_lshl_add_u32 v13, v9, 3, v13")
    e(f"s_add_u32 s39, s39, {WS_VT - 8*1024}")
    e("v_add_u32 v13, s39, v13")
    KF, VF, SP, TM, AC = 20, 56, 128, 200, 216
    for t in range(9):
        e(f"s_cmp_lt_i32 s35, {t+1}")
        e(f"s_cbranch_scc0 K2_L{t}")
        e(f"s_mov_b32 s40, {t*1024}")
        e(f"buffer_load_dwordx4 {vr(KF+4*t,4)}, v12, s[28:31], s40 offen")
        for cc in range(2):
            e(f"buffer_load_dwordx2 {vr(VF+8*t+4*cc,2)}, v13, s[28:31], s40 offen offset:{cc*32}")
            e(f"buffer_load_dwordx2 {vr(VF+8*t+4*cc+2,2)}, v13, s[28:31], s40 offen offset:{cc*32+16}")
        lab(f"K2_L{t}")
    e("v_lshlrev_b32 v14, 2, v9")
    e(f"v_mov_b32 v15, {NEG}")
    e("v_mov_b32 v3, v15")
    for t in range(9):
        e(f"s_cmp_lt_i32 s35, {t+1}")
        e(f"s_cbranch_scc0 K2_SK{t}")
        for i in range(16): e(f"v_mov_b32 v{TM+i}, 0")
        e(f"s_waitcnt vmcnt({(8-t)*5+4})")
        e("s_nop 1")
        e(f"v_mfma_f32_32x32x16_bf16 {vr(TM,16)}, {vr(KF+4*t,4)}, v[16:19], {vr(TM,16)}")
        e("s_nop 7"); e("s_nop 4")
        if t in (0, 8):
            for j in range(4):
                for i in range(4):
                    r = TM+4*j+i
                    e(f"v_add_u32 v4, {8*j+i}, v14")
                    e("v_cmp_gt_u32 vcc, v4, v8" if t == 0 else "v_cmp_le_u32 vcc, v4, v8")
                    e("s_nop 1")
                    e(f"v_cndmask_b32 v{r}, v15, v{r}, vcc")
        for i in range(8):
            e(f"v_cvt_pk_bf16_f32 v{SP+8*t+i}, v{TM+2*i}, v{TM+2*i+1}")
            e(f"v_max3_f32 v3, v3, v{TM+2*i}, v{TM+2*i+1}")
        e(f"s_branch K2_DN{t}")
        lab(f"K2_SK{t}")
        for i in range(8): e(f"v_mov_b32 v{SP+8*t+i}, 0xf149f149")
        lab(f"K2_DN{t}")
    rb("v3", "v3")
    e("ds_bpermute_b32 v4, v10, v3")
    e("s_waitcnt lgkmcnt(0)")
    e("v_max_f32 v3, v3, v4")
    e("v_mov_b32 v5, 0x3eb8aa3b")
    e("v_mul_f32 v3, v5, v3")
    e("v_mov_b32 v6, 0"); e("v_mov_b32 v7, 0")
    for r in range(0, 72, 2):
        for u in range(2):
            e(f"v_lshlrev_b32 v{TM+4*u}, 16, v{SP+r+u}")
            e(f"v_and_b32 v{TM+4*u+1}, 0xffff0000, v{SP+r+u}")
        for u in range(2):
            e(f"v_fma_f32 v{TM+4*u}, v{TM+4*u}, v5, -v3")
            e(f"v_fma_f32 v{TM+4*u+1}, v{TM+4*u+1}, v5, -v3")
        for u in range(2):
            e(f"v_exp_f32 v{TM+4*u}, v{TM+4*u}")
            e(f"v_exp_f32 v{TM+4*u+1}, v{TM+4*u+1}")
        for u in range(2):
            e(f"v_add_f32 v6, v6, v{TM+4*u}")
            e(f"v_add_f32 v7, v7, v{TM+4*u+1}")
            e(f"v_cvt_pk_bf16_f32 v{SP+r+u}, v{TM+4*u}, v{TM+4*u+1}")
    e("v_add_f32 v6, v6, v7")
    e("ds_bpermute_b32 v4, v10, v6")
    for i in range(16): e(f"v_mov_b32 v{AC+i}, 0")
    e("s_waitcnt vmcnt(0) lgkmcnt(0)")
    e("v_add_f32 v6, v6, v4")
    e("v_rcp_f32 v6, v6")
    for t in range(9):
        e(f"s_cmp_lt_i32 s35, {t+1}")
        e(f"s_cbranch_scc0 K2_SV{t}")
        for cc in range(2):
            e(f"v_mfma_f32_32x32x16_bf16 {vr(AC,16)}, {vr(VF+8*t+4*cc,4)}, {vr(SP+8*t+4*cc,4)}, {vr(AC,16)}")
        lab(f"K2_SV{t}")
    e("s_nop 7"); e("s_nop 7")
    for i in range(8): e(f"v_mul_f32 v{AC+i}, v{AC+i}, v6")
    for i in range(4): e(f"v_cvt_pk_bf16_f32 v{AC+i}, v{AC+2*i}, v{AC+2*i+1}")
    e("v_add_u32 v11, s3, v8")
    e("v_lshlrev_b32 v11, 10, v11")
    e("v_lshl_add_u32 v11, v9, 3, v11")
    e("s_lshl_b32 s38, s36, 5")
    e(f"s_add_u32 s38, s38, {WS_O}")
    e("v_add_u32 v11, s38, v11")
    e(f"buffer_store_dwordx2 {vr(AC,2)}, v11, s[28:31], 0 offen")
    e(f"buffer_store_dwordx2 {vr(AC+2,2)}, v11, s[28:31], 0 offen offset:16")
    e("s_endpgm")
    lab("K2_CONV")
    srd(36, 16, 512*2048*2)
    e("s_lshl_b32 s3, s2, 1")
    e("s_lshl_b32 s41, s3, 1")
    e("s_load_dword s48, s[18:19], s41")
    e("s_lshl_b32 s43, s3, 12")
    e("v_lshlrev_b32 v5, 4, v0")
    e("buffer_load_dwordx4 v[40:43], v5, s[36:39], s43 offen")
    e(f"s_add_u32 s44, s43, {WS_KV}")
    e("buffer_load_dwordx4 v[48:51], v5, s[28:31], s44 offen")
    e("s_add_u32 s43, s43, 4096")
    e("buffer_load_dwordx4 v[44:47], v5, s[36:39], s43 offen")
    e("s_add_u32 s44, s44, 4096")
    e("buffer_load_dwordx4 v[52:55], v5, s[28:31], s44 offen")
    for i in range(4): e(f"v_mov_b32 v{56+i}, 0")
    e("v_cmp_gt_u32 vcc, 128, v0")
    e("s_and_saveexec_b64 s[50:51], vcc")
    e(f"ds_write_b128 v5, v[56:59] offset:{HCB}")
    e(f"ds_write_b128 v5, v[56:59] offset:{CHB+HCB}")
    e("s_mov_b64 exec, s[50:51]")
    e("v_cmp_gt_u32 vcc, 4, v0")
    e("s_and_saveexec_b64 s[50:51], vcc")
    e(f"v_add_u32 v6, {HS_OFF}, v5")
    e("ds_write_b128 v6, v[56:59]")
    e(f"ds_write_b128 v6, v[56:59] offset:{HS_CH}")
    e(f"ds_write_b128 v6, v[56:59] offset:{64+4096}")
    e(f"ds_write_b128 v6, v[56:59] offset:{HS_CH+64+4096}")
    e("s_mov_b64 exec, s[50:51]")
    e("s_waitcnt vmcnt(0)")
    e(f"v_add_u32 v6, {HS_OFF+64}, v5")
    e("ds_write_b128 v6, v[40:43]")
    e(f"ds_write_b128 v6, v[44:47] offset:{HS_CH}")
    e(f"ds_write_b128 v5, v[48:51] offset:{HCB+XZ}")
    e(f"ds_write_b128 v5, v[52:55] offset:{CHB+HCB+XZ}")
    e("s_waitcnt lgkmcnt(0)")
    e("s_barrier")
    NIT = 2*4*261
    nit = (NIT+255)//256
    for it in range(nit):
        e(f"v_add_u32 v7, {it*256}, v0")
        e("v_mul_u32_u24 v8, 16071, v7")
        e("v_lshrrev_b32 v8, 22, v8")
        e("v_min_u32 v8, 7, v8")
        e("v_mul_u32_u24 v9, 261, v8")
        e("v_sub_u32 v9, v7, v9")
        e("v_min_u32 v9, 260, v9")
        e("v_lshrrev_b32 v10, 2, v8")
        e("v_and_b32 v11, 3, v8")
        e(f"v_mul_u32_u24 v12, {HS_CH}, v10")
        e("v_lshl_add_u32 v12, v9, 4, v12")
        e("v_lshrrev_b32 v13, 1, v11")
        e("v_lshl_add_u32 v12, v13, 2, v12")
        e(f"v_add_u32 v12, {HS_OFF}, v12")
        b_ = 64+8*it
        e(f"ds_read2_b32 v[{b_}:{b_+1}], v12 offset0:0 offset1:1")
        e(f"ds_read2_b32 v[{b_+2}:{b_+3}], v12 offset0:2 offset1:3")
        e(f"ds_read_b32 v{b_+4}, v12 offset:16")
        e("v_and_b32 v13, 1, v11")
        e(f"v_lshlrev_b32 v{b_+5}, 1, v13")
        e(f"v_mul_u32_u24 v14, {CHB}, v10")
        e(f"v_mul_u32_u24 v15, {CPB}, v11")
        e("v_add_u32 v14, v14, v15")
        e(f"v_lshl_add_u32 v{b_+6}, v9, 4, v14")
    e("s_waitcnt lgkmcnt(0)")
    for it in range(nit):
        b_ = 64+8*it
        for i in range(4):
            e(f"v_alignbyte_b32 v{28+i}, v{b_+1+i}, v{b_+i}, v{b_+5}")
        e(f"ds_write_b128 v{b_+6}, v[28:31]")
    e("s_waitcnt lgkmcnt(0)")
    e("s_barrier")
    e("s_lshr_b32 s61, s32, 1")
    e("s_and_b32 s62, s32, 1")
    e(f"s_mul_i32 s63, s61, {CHB}")
    e("v_and_b32 v8, 31, v1")
    e("v_lshrrev_b32 v9, 5, v1")
    e("v_add_u32 v10, 1, v8")
    e("v_and_b32 v10, 3, v10")
    e("v_add_u32 v11, 25, v8")
    e("v_sub_u32 v11, v11, v10")
    e("v_lshlrev_b32 v13, 3, v9")
    e("v_sub_u32 v11, v11, v13")
    e(f"v_mul_u32_u24 v12, {CPB}, v10")
    e("v_lshl_add_u32 v12, v11, 1, v12")
    e("v_add_u32 v12, s63, v12")
    e("v_subrev_u32 v12, 32, v12")
    e("s_lshl_b32 s64, s62, 5")
    e("v_add_u32 v13, s64, v8")
    e("v_lshlrev_b32 v13, 2, v13")
    e("v_add_u32 v13, v13, v9")
    e("v_lshlrev_b32 v13, 4, v13")
    e(f"s_add_u32 s65, s63, {HCB+XZ}")
    e("v_add_u32 v13, s65, v13")
    for i in range(16): e(f"v_mov_b32 v{32+i}, 0")
    e("s_lshl_b32 s66, s62, 5")
    e("s_add_u32 s66, s66, 32")
    e("s_mov_b32 s67, 0")
    def rdc(b_):
        e(f"ds_read_b64 v[{b_}:{b_+1}], v12 offset:32")
        e(f"ds_read_b64 v[{b_+2}:{b_+3}], v12 offset:40")
        e(f"ds_read_b128 v[{b_+4}:{b_+7}], v13")
        e(f"ds_read_b64 v[{b_+8}:{b_+9}], v12")
        e(f"ds_read_b64 v[{b_+10}:{b_+11}], v12 offset:8")
        e(f"ds_read_b128 v[{b_+12}:{b_+15}], v13 offset:32")
        e("v_add_u32 v12, 64, v12")
        e("v_max_i32 v13, s65, v13") if False else None
        e("v_subrev_u32 v13, 64, v13")
    rdc(16); rdc(64)
    lab("K2_CONV_LOOP")
    for b_ in (16, 64):
        e("s_waitcnt lgkmcnt(6)")
        e(f"v_mfma_f32_32x32x16_bf16 v[32:47], v[{b_}:{b_+3}], v[{b_+4}:{b_+7}], v[32:47]")
        e(f"v_mfma_f32_32x32x16_bf16 v[32:47], v[{b_+8}:{b_+11}], v[{b_+12}:{b_+15}], v[32:47]")
        rdc(b_)
    e("s_add_u32 s67, s67, 2")
    e("s_cmp_lt_u32 s67, s66")
    e("s_cbranch_scc1 K2_CONV_LOOP")
    e("s_waitcnt lgkmcnt(0)")
    e("s_nop 7"); e("s_nop 7")
    e("s_lshl_b32 s68, s61, 4")
    e("s_lshr_b32 s68, s48, s68")
    e("s_lshl_b32 s68, s68, 16")
    e("v_add_u32 v13, s64, v8")
    e("v_lshlrev_b32 v14, 6, v13")
    e("v_add_u32 v14, s65, v14")
    e("v_sub_u32 v15, 1, v9")
    e("v_lshl_add_u32 v14, v15, 3, v14")
    for j in range(4):
        e(f"ds_read_b64 v[{16+2*j}:{17+2*j}], v14 offset:{16*j}")
    e("s_add_u32 s69, s3, s61")
    e("s_lshl_b32 s69, s69, 12")
    e(f"s_add_u32 s69, s69, {WS_YT}")
    e("v_lshlrev_b32 v15, 6, v13")
    e("v_lshl_add_u32 v15, v9, 3, v15")
    e("v_add_u32 v15, s69, v15")
    e("s_waitcnt lgkmcnt(0)")
    for j in range(4):
        a, b = 16+2*j, 17+2*j
        e(f"v_and_b32 v48, 0xffff0000, v{b}"); e(f"v_lshlrev_b32 v49, 16, v{b}")
        e(f"v_and_b32 v50, 0xffff0000, v{a}"); e(f"v_lshlrev_b32 v51, 16, v{a}")
        for i in range(4):
            e(f"v_mul_f32 v{48+i}, s68, v{48+i}"); rb(f"v{48+i}", f"v{48+i}")
            rb(f"v{52+i}", f"v{32+4*j+i}")
            e(f"v_add_f32 v{48+i}, v{48+i}, v{52+i}")
        e(f"v_cvt_pk_bf16_f32 v{56+2*(j&1)}, v48, v49")
        e(f"v_cvt_pk_bf16_f32 v{57+2*(j&1)}, v50, v51")
        e(f"buffer_store_dwordx2 {vr(56+2*(j&1),2)}, v15, s[28:31], 0 offen offset:{16*j}")
    lab("K2_END")
    e("s_endpgm")
```

```python
from common import *
def k3(L):
    e, lab, vr, srd, rb = mk(L)
    lab("k3_kernel")
    e("s_cmp_ge_u32 s2, 512")
    e("s_cbranch_scc1 K3_END")
    e("s_load_dwordx2 s[4:5], s[0:1], 0")
    e("s_load_dwordx2 s[10:11], s[0:1], 80")
    e("s_load_dwordx2 s[12:13], s[0:1], 96")
    e("v_and_b32 v1, 63, v0")
    e("v_lshrrev_b32 v2, 6, v0")
    e("s_nop 1")
    e("v_readfirstlane_b32 s32, v2")
    e("s_lshr_b32 s3, s2, 3")
    e("s_lshl_b32 s3, s3, 5")
    e("s_and_b32 s33, s2, 7")
    e("s_lshl_b32 s33, s33, 1")
    e("s_and_b32 s34, s32, 1")
    e("s_add_u32 s33, s33, s34")
    e("s_lshl_b32 s36, s33, 5")
    e("s_lshr_b32 s37, s32, 1")
    e("s_lshl_b32 s39, s37, 9")
    e("s_waitcnt lgkmcnt(0)")
    srd(16, 4, 2048*512*2); srd(24, 10, 2048*512*2); srd(28, 12, 0x10000000)
    e("v_and_b32 v8, 31, v1")
    e("v_lshrrev_b32 v9, 5, v1")
    e("s_and_b32 s43, s2, 7")
    e("s_lshl_b32 s43, s43, 16")
    e(f"s_add_u32 s43, s43, {WS_WOT}")
    e("s_lshl_b32 s44, s3, 10")
    e(f"s_add_u32 s44, s44, {WS_O}")
    e("v_lshlrev_b32 v11, 4, v0")
    e("v_lshlrev_b32 v12, 4, v1")
    e("v_mul_u32_u24 v17, 1040, v2")
    e("v_add_u32 v12, v12, v17")
    for i in range(24):
        e(f"s_add_u32 s45, {'s43' if i<16 else 's44'}, {(i%16)*4096}")
        e(f"buffer_load_dwordx4 {vr(64+4*i,4)}, v11, s[28:31], s45 offen")
    for i in range(24):
        e(f"s_waitcnt vmcnt({23-i})")
        if i % 12 == 0 and i: e(f"v_add_u32 v12, {12*4160}, v12")
        e(f"ds_write_b128 v12, {vr(64+4*i,4)} offset:{(i%12)*4160}")
    e("s_lshl_b32 s45, s34, 5")
    e("v_add_u32 v11, s45, v8")
    e("v_mul_u32_u24 v11, 1040, v11")
    e("v_lshl_add_u32 v11, v9, 4, v11")
    e("v_add_u32 v11, s39, v11")
    e("v_add_u32 v12, 64, v8")
    e("v_mul_u32_u24 v12, 1040, v12")
    e("v_lshl_add_u32 v12, v9, 4, v12")
    e("v_add_u32 v12, s39, v12")
    e("s_waitcnt lgkmcnt(0)")
    e("s_barrier")
    for kk in range(16):
        e(f"ds_read_b128 {vr(64+8*kk,4)}, v11 offset:{kk*32}")
        e(f"ds_read_b128 {vr(68+8*kk,4)}, v12 offset:{kk*32}")
    e("v_add_u32 v13, s3, v8")
    e("v_lshlrev_b32 v14, 2, v13")
    e(f"v_add_u32 v14, {WS_G}, v14")
    e("v_lshlrev_b32 v13, 10, v13")
    e("v_lshl_add_u32 v13, v9, 3, v13")
    e("s_lshl_b32 s38, s36, 1")
    e("v_add_u32 v13, s38, v13")
    e("v_lshl_add_u32 v15, v9, 2, s36")
    e("v_lshlrev_b32 v15, 12, v15")
    e("v_add_u32 v3, s3, v8")
    e("v_lshl_add_u32 v15, v3, 1, v15")
    e(f"v_add_u32 v15, {WS_YT}, v15")
    XB, YB = 192, 200
    e("s_cmp_eq_u32 s37, 0")
    e("s_cbranch_scc0 K3_NOEP")
    e("buffer_load_dword v4, v14, s[28:31], 0 offen")
    for j in range(4):
        e(f"buffer_load_dwordx2 {vr(XB+2*j,2)}, v13, s[16:19], 0 offen offset:{16*j}")
        for i in range(4):
            e(f"s_mov_b32 s41, {(8*j+i)*4096}")
            e(f"buffer_load_ushort v{YB+4*j+i}, v15, s[28:31], s41 offen")
    lab("K3_NOEP")
    for i in range(16): e(f"v_mov_b32 v{32+i}, 0")
    e("s_waitcnt lgkmcnt(0)")
    for kk in range(16):
        e(f"v_mfma_f32_32x32x16_bf16 v[32:47], {vr(64+8*kk,4)}, {vr(68+8*kk,4)}, v[32:47]")
    e("s_nop 7"); e("s_nop 7")
    e("s_barrier")
    e("v_lshlrev_b32 v16, 4, v1")
    e("s_lshl_b32 s42, s34, 12")
    e("v_add_u32 v16, s42, v16")
    e("s_cmp_eq_u32 s37, 0")
    e("s_cbranch_scc1 K3_H0")
    for j in range(4): e(f"ds_write_b128 v16, {vr(32+4*j,4)} offset:{1024*j}")
    e("s_waitcnt lgkmcnt(0)")
    e("s_barrier")
    e("s_endpgm")
    lab("K3_H0")
    e("s_barrier")
    for j in range(4): e(f"ds_read_b128 {vr(48+4*j,4)}, v16 offset:{1024*j}")
    e("s_waitcnt vmcnt(0) lgkmcnt(0)")
    for i in range(16): e(f"v_add_f32 v{32+i}, v{32+i}, v{48+i}")
    e("v_sub_f32 v5, 1.0, v4"); rb("v5","v5")
    for j in range(4):
        e(f"v_lshlrev_b32 v24, 16, v{XB+2*j}"); e(f"v_and_b32 v25, 0xffff0000, v{XB+2*j}")
        e(f"v_lshlrev_b32 v26, 16, v{XB+2*j+1}"); e(f"v_and_b32 v27, 0xffff0000, v{XB+2*j+1}")
        for i in range(4):
            e(f"v_lshlrev_b32 v{20+i}, 16, v{YB+4*j+i}")
            e(f"v_mul_f32 v{20+i}, v{20+i}, v{24+i}"); rb(f"v{20+i}", f"v{20+i}")
            e(f"v_mul_f32 v{20+i}, v4, v{20+i}"); rb(f"v{20+i}", f"v{20+i}")
            rb(f"v{24+i}", f"v{32+4*j+i}")
            e(f"v_mul_f32 v{24+i}, v5, v{24+i}"); rb(f"v{24+i}", f"v{24+i}")
            e(f"v_add_f32 v{20+i}, v{20+i}, v{24+i}")
        e(f"v_cvt_pk_bf16_f32 v{28+2*(j&1)}, v20, v21")
        e(f"v_cvt_pk_bf16_f32 v{29+2*(j&1)}, v22, v23")
        e(f"buffer_store_dwordx2 {vr(28+2*(j&1),2)}, v13, s[24:27], 0 offen offset:{16*j}")
    lab("K3_END")
    e("s_endpgm")
```

```python
import os
import k1, k2, k3
NAME = "gated_mix__ssm_conv_h3__sliding_block__prompt"
def desc(name, vg=256):
    return f""".amdhsa_kernel {name}
  .amdhsa_next_free_vgpr {vg}
  .amdhsa_next_free_sgpr 102
  .amdhsa_accum_offset {vg}
  .amdhsa_group_segment_fixed_size 0
  .amdhsa_kernarg_size 104
  .amdhsa_user_sgpr_count 2
  .amdhsa_user_sgpr_kernarg_segment_ptr 1
  .amdhsa_system_sgpr_workgroup_id_x 1
.end_amdhsa_kernel"""
L = [f"; @launch kernel=k1_kernel grid=({k1.K1_GRID},1,1) block=(256,1,1) lds={k1.K1_LDS}",
     f"; @launch kernel=k2_kernel grid=({k2.K2_GRID},1,1) block=(256,1,1) lds={k2.K2_LDS}",
     f"; @launch kernel=k3_kernel grid=(256,1,1) block=(256,1,1) lds={k3.K3_LDS}",
     '.amdgcn_target "amdgcn-amd-amdhsa--gfx950"', ".text"]
for n, f in (("k1", k1.k1), ("k2", k2.k2), ("k3", k3.k3)):
    L += [f".globl {n}_kernel", ".p2align 8", f".type {n}_kernel,@function"]; f(L)
out = "\n".join(L) + "\n.section .rodata,\"a\"\n" + "".join(".p2align 6\n" + desc(n+"_kernel", 168 if n!="k3" else 256) + "\n" for n in ("k1","k2","k3"))
open(os.environ.get("OUTS", f"cdna_kernels/{NAME}.s"), "w").write(out)
```

```python
from common import *
N_GEMM, N_KV, N_WOT, N_GATE = 384, 256, 128, 128
K1_GRID = N_GEMM + N_KV + N_WOT + N_GATE
XSTR, WSTR = 272, 144
XOFF, WOFF = 0, 128*XSTR
K1_LDS = WOFF + 128*WSTR
def k1(L):
    e, lab, vr, srd, rb = mk(L)
    lab("k1_kernel")
    e(f"s_cmp_ge_u32 s2, {K1_GRID}")
    e("s_cbranch_scc1 K1_END")
    e("s_load_dwordx4 s[4:7], s[0:1], 0")
    e("s_load_dwordx4 s[8:11], s[0:1], 16")
    e("s_load_dwordx4 s[16:19], s[0:1], 56")
    e("s_load_dwordx2 s[20:21], s[0:1], 96")
    e("s_load_dwordx2 s[22:23], s[0:1], 72")
    e("v_and_b32 v1, 63, v0")
    e("v_lshrrev_b32 v2, 6, v0")
    e("s_waitcnt lgkmcnt(0)")
    srd(24, 20, 0x10000000)
    e(f"s_cmp_lt_u32 s2, {N_GEMM}")
    e("s_cbranch_scc1 K1_GEMM")
    e(f"s_cmp_lt_u32 s2, {N_GEMM+N_KV}")
    e("s_cbranch_scc1 K1_KV")
    e(f"s_cmp_lt_u32 s2, {N_GEMM+N_KV+N_WOT}")
    e("s_cbranch_scc1 K1_WOT")
    srd(28, 4, 2048*512*2); srd(32, 22, 1024)
    e(f"s_sub_u32 s3, s2, {N_GEMM+N_KV+N_WOT}")
    e("s_lshl_b32 s3, s3, 4")
    e("v_lshrrev_b32 v6, 4, v0")
    e("v_add_u32 v6, s3, v6")
    e("v_and_b32 v7, 15, v0")
    e("v_lshlrev_b32 v8, 10, v6")
    e("v_lshl_add_u32 v8, v7, 4, v8")
    e("v_lshlrev_b32 v9, 4, v7")
    for i in range(4):
        e(f"buffer_load_dwordx4 {vr(80+4*i,4)}, v8, s[28:31], 0 offen offset:{256*i}")
        e(f"buffer_load_dwordx4 {vr(96+4*i,4)}, v9, s[32:35], 0 offen offset:{256*i}")
    e("s_waitcnt vmcnt(0)")
    e("v_mov_b32 v11, 0")
    for i in range(16):
        for hi in range(2):
            if hi: e(f"v_and_b32 v12, 0xffff0000, v{80+i}"); e(f"v_and_b32 v13, 0xffff0000, v{96+i}")
            else:  e(f"v_lshlrev_b32 v12, 16, v{80+i}"); e(f"v_lshlrev_b32 v13, 16, v{96+i}")
            e("v_mul_f32 v12, v12, v13"); rb("v12","v12")
            e("v_add_f32 v11, v11, v12")
    for x in (1,2,4,8):
        e(f"ds_swizzle_b32 v12, v11 offset:{(x<<10)|0x1f}")
        e("s_waitcnt lgkmcnt(0)")
        e("v_add_f32 v11, v11, v12")
    rb("v11","v11")
    e("v_mul_f32 v11, 0xbfb8aa3b, v11")
    e("v_exp_f32 v11, v11"); e("s_nop 0")
    e("v_add_f32 v11, 1.0, v11")
    e("v_rcp_f32 v11, v11"); e("s_nop 0")
    rb("v11","v11")
    e("v_lshlrev_b32 v12, 2, v6")
    e(f"v_add_u32 v12, {WS_G}, v12")
    e("buffer_store_dword v11, v12, s[24:27], 0 offen")
    e("s_endpgm")
    lab("K1_WOT")
    srd(28, 18, 512*512*2)
    e(f"s_sub_u32 s3, s2, {N_GEMM+N_KV}")
    e("s_lshl_b32 s3, s3, 8")
    e("v_add_u32 v3, s3, v0")
    e("v_and_b32 v4, 511, v3")
    e("v_lshrrev_b32 v5, 9, v3")
    e("v_lshlrev_b32 v6, 13, v5")
    e("v_lshl_add_u32 v6, v4, 1, v6")
    for i in range(8):
        e(f"s_mov_b32 s70, {i*1024}")
        e(f"buffer_load_ushort v{8+i}, v6, s[28:31], s70 offen")
    e("s_waitcnt vmcnt(0)")
    for i in range(4):
        e(f"v_lshlrev_b32 v{9+2*i}, 16, v{9+2*i}")
        e(f"v_or_b32 v{16+i}, v{8+2*i}, v{9+2*i}")
    e("v_lshlrev_b32 v6, 10, v4")
    e("v_lshl_add_u32 v6, v5, 4, v6")
    e(f"v_add_u32 v6, {WS_WOT}, v6")
    e("buffer_store_dwordx4 v[16:19], v6, s[24:27], 0 offen")
    e("s_endpgm")
    lab("K1_KV")
    srd(28, 6, 2048*512*2); srd(32, 8, 2048*512*2); srd(36, 10, 4096)
    e(f"s_sub_u32 s3, s2, {N_GEMM}")
    e("s_lshr_b32 s40, s3, 3")
    e("s_lshl_b32 s40, s40, 6")
    e("s_and_b32 s41, s3, 7")
    e("s_lshl_b32 s41, s41, 6")
    e("v_and_b32 v3, 7, v0")
    e("v_lshrrev_b32 v4, 3, v0")
    e("v_add_u32 v5, s40, v4")
    e("v_lshlrev_b32 v5, 10, v5")
    e("v_lshl_add_u32 v5, v3, 4, v5")
    e("s_lshl_b32 s42, s41, 1")
    e("v_add_u32 v5, s42, v5")
    for rr in range(2):
        for t in range(4):
            e(f"v_add_u32 v6, {(rr*32+t-3)*1024}, v5")
            e(f"buffer_load_dwordx4 {vr(16+16*rr+4*t,4)}, v6, s[28:31], 0 offen")
        e(f"s_mov_b32 s70, {rr*32*1024}")
        e(f"buffer_load_dwordx4 {vr(48+4*rr,4)}, v5, s[32:35], s70 offen")
    e("v_add_u32 v6, s41, v3")
    e("v_lshlrev_b32 v6, 3, v3")
    e("v_add_u32 v6, s41, v6")
    e("v_lshlrev_b32 v6, 3, v6")
    for i in range(4):
        e(f"buffer_load_dwordx4 {vr(56+4*i,4)}, v6, s[36:39], 0 offen offset:{16*i}")
    e("s_waitcnt vmcnt(0)")
    e("v_and_b32 v7, 7, v4")
    e("v_sub_u32 v7, 7, v7")
    e("v_and_b32 v8, 0x38, v4")
    e("v_add_u32 v7, v7, v8")
    e("v_lshlrev_b32 v7, 1, v7")
    e("v_mul_u32_u24 v8, 1152, v3")
    e("v_add_u32 v7, v7, v8")
    for rr in range(2):
        for c_ in range(8):
            d, hi = c_>>1, c_&1
            def un(dst, src):
                if hi: e(f"v_and_b32 {dst}, 0xffff0000, {src}")
                else:  e(f"v_lshlrev_b32 {dst}, 16, {src}")
            w0, w1 = 56+2*c_, 57+2*c_
            e(f"v_lshlrev_b32 v80, 16, v{w0}"); e(f"v_and_b32 v81, 0xffff0000, v{w0}")
            e(f"v_lshlrev_b32 v82, 16, v{w1}"); e(f"v_and_b32 v83, 0xffff0000, v{w1}")
            un("v84", f"v{16+16*rr+0+d}"); e("v_mul_f32 v84, v83, v84"); rb("v84","v84")
            un("v85", f"v{16+16*rr+4+d}"); e("v_mul_f32 v85, v82, v85"); rb("v85","v85")
            e("v_add_f32 v84, v84, v85"); rb("v84","v84")
            un("v85", f"v{16+16*rr+8+d}"); e("v_mul_f32 v85, v81, v85"); rb("v85","v85")
            e("v_add_f32 v84, v84, v85"); rb("v84","v84")
            un("v85", f"v{16+16*rr+12+d}"); e("v_mul_f32 v85, v80, v85"); rb("v85","v85")
            e("v_add_f32 v84, v84, v85"); rb("v84","v84")
            un("v85", f"v{48+4*rr+d}"); e("v_mul_f32 v84, v84, v85")
            e("v_cvt_pk_bf16_f32 v84, v84, v84")
            e(f"ds_write_b16 v7, v84 offset:{c_*144+rr*64}")
    e("s_waitcnt lgkmcnt(0)")
    e("s_barrier")
    for i in range(2):
        e(f"v_add_u32 v8, {i*256}, v0")
        e("v_lshrrev_b32 v9, 3, v8")
        e("v_and_b32 v10, 7, v8")
        e("v_mul_u32_u24 v11, 144, v9")
        e("v_lshl_add_u32 v11, v10, 4, v11")
        e(f"ds_read_b128 {vr(16+4*i,4)}, v11")
        e("v_add_u32 v9, s41, v9")
        e("v_lshlrev_b32 v9, 12, v9")
        e("v_lshl_add_u32 v9, v10, 4, v9")
        e("s_lshl_b32 s42, s40, 1")
        e(f"s_add_u32 s42, s42, {WS_KV}")
        e(f"v_add_u32 v{12+i}, s42, v9")
    e("s_waitcnt lgkmcnt(0)")
    for i in range(2):
        e(f"buffer_store_dwordx4 {vr(16+4*i,4)}, v{12+i}, s[24:27], 0 offen")
    e("s_endpgm")
    lab("K1_GEMM")
    srd(28, 4, 2048*512*2); srd(32, 16, 512*1536*2)
    e("s_mul_i32 s36, s2, 2731")
    e("s_lshr_b32 s36, s36, 16")
    e("s_mul_i32 s37, s36, 24")
    e("s_sub_u32 s37, s2, s37")
    e("s_lshl_b32 s38, s37, 7")
    e("s_lshl_b32 s39, s36, 17")
    e("v_lshrrev_b32 v3, 4, v0")
    e("v_and_b32 v4, 15, v0")
    e("v_lshlrev_b32 v5, 10, v3")
    e("v_lshl_add_u32 v5, v4, 4, v5")
    e(f"v_mul_u32_u24 v7, {XSTR}, v3")
    e("v_lshl_add_u32 v7, v4, 4, v7")
    e("v_lshrrev_b32 v3, 3, v0")
    e("v_and_b32 v4, 7, v0")
    e("v_mul_u32_u24 v6, 3072, v3")
    e("v_lshl_add_u32 v6, v4, 4, v6")
    e(f"v_mul_u32_u24 v18, {WSTR}, v3")
    e("v_lshl_add_u32 v18, v4, 4, v18")
    e(f"v_add_u32 v18, {WOFF}, v18")
    def gload(ch):
        for i in range(8):
            e(f"s_add_u32 s40, s39, {i*16*1024 + ch*256}")
            e(f"buffer_load_dwordx4 {vr(96+4*i,4)}, v5, s[28:31], s40 offen")
        for i in range(4):
            e(f"s_add_u32 s40, s38, {(ch*128+i*32)*3072}")
            e(f"buffer_load_dwordx4 {vr(128+4*i,4)}, v6, s[32:35], s40 offen")
    gload(0)
    e("v_and_b32 v8, 31, v1"); e("v_lshrrev_b32 v9, 5, v1")
    e("v_lshl_add_u32 v12, v2, 5, v8")
    e(f"v_mul_u32_u24 v12, {XSTR}, v12")
    e("v_lshl_add_u32 v12, v9, 4, v12")
    e("v_lshrrev_b32 v13, 4, v1"); e("v_and_b32 v14, 15, v1")
    e("v_lshrrev_b32 v15, 1, v13"); e("v_lshlrev_b32 v15, 3, v15")
    e("v_lshrrev_b32 v16, 2, v14"); e("v_add_u32 v15, v15, v16")
    e(f"v_mul_u32_u24 v15, {WSTR}, v15")
    e("v_and_b32 v16, 1, v13"); e("v_lshlrev_b32 v16, 5, v16")
    e("v_and_b32 v17, 3, v14"); e("v_lshl_add_u32 v16, v17, 3, v16")
    e("v_add_u32 v15, v15, v16")
    e(f"v_add_u32 v15, {WOFF}, v15")
    for i in range(32): e(f"v_mov_b32 v{64+i}, 0")
    e("s_cmp_ge_u32 s37, 16")
    def body(swap):
        for ch in range(4):
            for i in range(12):
                e(f"s_waitcnt vmcnt({11-i})")
                if i < 8: e(f"ds_write_b128 v7, {vr(96+4*i,4)} offset:{i*16*XSTR}")
                else:     e(f"ds_write_b128 v18, {vr(96+4*i,4)} offset:{(i-8)*32*WSTR}")
            e("s_waitcnt lgkmcnt(0)")
            e("s_barrier")
            if ch < 3: gload(ch+1)
            def rd(kk):
                b = 32+ 12*(kk%2)
                e(f"ds_read_b128 {vr(b,4)}, v12 offset:{kk*32}")
                for t in range(2):
                    for r_ in range(2):
                        e(f"ds_read_b64_tr_b16 {vr(b+4+4*t+2*r_,2)}, v15 offset:{kk*16*WSTR+r_*4*WSTR+t*64}")
            rd(0)
            for kk in range(8):
                if kk < 7: rd(kk+1); e("s_waitcnt lgkmcnt(5)")
                else: e("s_waitcnt lgkmcnt(0)")
                b = 32+12*(kk%2)
                for t in range(2):
                    X = vr(b,4); W = vr(b+4+4*t,4); D = vr(64+16*t,16)
                    if swap: e(f"v_mfma_f32_32x32x16_bf16 {D}, {X}, {W}, {D}")
                    else:    e(f"v_mfma_f32_32x32x16_bf16 {D}, {W}, {X}, {D}")
            if ch < 3: e("s_barrier")
        e("s_nop 7"); e("s_nop 7")
    e("s_cbranch_scc1 K1_GEMM_V")
    body(False)
    e("s_lshr_b32 s42, s37, 3")
    e("s_lshl_b32 s42, s42, 21")
    e("s_and_b32 s43, s37, 7")
    e("s_lshl_b32 s43, s43, 18")
    e("s_add_u32 s42, s42, s43")
    e("s_lshl_b32 s43, s36, 12")
    e("s_add_u32 s42, s42, s43")
    e("v_lshl_add_u32 v12, v2, 5, v8")
    e("v_lshlrev_b32 v12, 5, v12")
    e("v_lshl_add_u32 v12, v9, 3, v12")
    e("v_add_u32 v12, s42, v12")
    for t in range(2):
        for j in range(4):
            b = 64+16*t+4*j
            e(f"v_cvt_pk_bf16_f32 v{48+2*(j&1)}, v{b}, v{b+1}")
            e(f"v_cvt_pk_bf16_f32 v{49+2*(j&1)}, v{b+2}, v{b+3}")
            e(f"s_mov_b32 s43, {(2*t+(j>>1))*65536}")
            e(f"buffer_store_dwordx2 {vr(48+2*(j&1),2)}, v12, s[24:27], s43 offen offset:{(j&1)*16}")
    e("s_endpgm")
    lab("K1_GEMM_V")
    body(True)
    e("s_sub_u32 s42, s37, 16")
    e("s_lshl_b32 s42, s42, 18")
    e(f"s_add_u32 s42, s42, {WS_VT}")
    e("s_lshl_b32 s43, s36, 12")
    e("s_add_u32 s42, s42, s43")
    e("v_lshrrev_b32 v12, 4, v8")
    e("v_lshlrev_b32 v12, 16, v12")
    e("v_and_b32 v13, 15, v8")
    e("v_lshl_add_u32 v12, v13, 6, v12")
    e("v_lshl_add_u32 v12, v9, 3, v12")
    e("v_lshl_add_u32 v12, v2, 10, v12")
    e("v_add_u32 v12, s42, v12")
    for t in range(2):
        for j in range(4):
            b = 64+16*t+4*j
            e(f"v_cvt_pk_bf16_f32 v{48+2*(j&1)}, v{b}, v{b+1}")
            e(f"v_cvt_pk_bf16_f32 v{49+2*(j&1)}, v{b+2}, v{b+3}")
            e(f"s_mov_b32 s43, {t*131072}")
            e(f"buffer_store_dwordx2 {vr(48+2*(j&1),2)}, v12, s[24:27], s43 offen offset:{j*16}")
    lab("K1_END")
    e("s_endpgm")
```

```python
from common import *
N_CONV, N_ATT = 256, 512
K2_GRID = N_CONV + N_ATT
CPB = 4176
HCB = 4*CPB
XZ = 2048
XBB = XZ + 4096
CHB = HCB + XBB
HS_OFF = 2*CHB
HS_CH = (32+2048+32)*2
K2_LDS = 2*CHB
NEG = "0xf149f2ca"
def k2(L):
    e, lab, vr, srd, rb = mk(L)
    lab("k2_kernel")
    e(f"s_cmp_ge_u32 s2, {K2_GRID}")
    e("s_cbranch_scc1 K2_END")
    e("s_load_dwordx2 s[12:13], s[0:1], 96")
    e("s_load_dwordx4 s[16:19], s[0:1], 32")
    e("v_and_b32 v1, 63, v0")
    e("v_lshrrev_b32 v2, 6, v0")
    e("s_nop 1")
    e("v_readfirstlane_b32 s32, v2")
    e("s_waitcnt lgkmcnt(0)")
    srd(28, 12, 0x10000000)
    e(f"s_cmp_lt_u32 s2, {N_CONV}")
    import os
    only = os.environ.get("K2ONLY","")
    e("s_cbranch_scc1 " + ("K2_END" if only=="att" else "K2_CONV"))
    if only=="conv": e("s_branch K2_END")
    e(f"s_sub_u32 s6, s2, {N_CONV}")
    e("s_lshr_b32 s4, s6, 3")
    e("s_and_b32 s5, s6, 7")
    e("s_lshl_b32 s3, s4, 5")
    e("s_lshl_b32 s36, s5, 2")
    e("s_add_u32 s36, s36, s32")
    e("v_and_b32 v8, 31, v1")
    e("v_lshrrev_b32 v9, 5, v1")
    e("v_xor_b32 v10, 32, v1")
    e("v_lshlrev_b32 v10, 2, v10")
    e("s_sub_u32 s35, 8, s4")
    e("s_max_i32 s35, s35, 0")
    e("s_lshl_b32 s38, s36, 16")
    e("s_lshl_b32 s39, s3, 5")
    e("s_add_u32 s39, s39, s38")
    e("v_lshlrev_b32 v11, 5, v8")
    e("v_lshl_add_u32 v11, v9, 4, v11")
    e("v_add_u32 v11, s39, v11")
    e("buffer_load_dwordx4 v[16:19], v11, s[28:31], 0 offen")
    e(f"v_add_u32 v12, {WS_K - 256*32}, v11")
    e("v_and_b32 v13, 15, v1")
    e("v_lshlrev_b32 v13, 6, v13")
    e("v_lshl_add_u32 v13, v9, 3, v13")
    e(f"s_add_u32 s39, s39, {WS_VT - 8*1024}")
    e("v_add_u32 v13, s39, v13")
    SP, VF = 20, 92
    KF, TM, AC = 92, 128, 0
    for t in range(9):
        e(f"s_cmp_lt_i32 s35, {t+1}")
        e(f"s_cbranch_scc0 K2_L{t}")
        e(f"s_mov_b32 s40, {t*1024}")
        e(f"buffer_load_dwordx4 {vr(KF+4*t,4)}, v12, s[28:31], s40 offen")
        lab(f"K2_L{t}")
    e("v_lshlrev_b32 v14, 2, v9")
    e(f"v_mov_b32 v15, {NEG}")
    e("v_mov_b32 v3, v15")
    for t in range(9):
        e(f"s_cmp_lt_i32 s35, {t+1}")
        e(f"s_cbranch_scc0 K2_SK{t}")
        for i in range(16): e(f"v_mov_b32 v{TM+i}, 0")
        e(f"s_waitcnt vmcnt({8-t})")
        e("s_nop 1")
        e(f"v_mfma_f32_32x32x16_bf16 {vr(TM,16)}, {vr(KF+4*t,4)}, v[16:19], {vr(TM,16)}")
        e("s_nop 7"); e("s_nop 4")
        if t in (0, 8):
            for j in range(4):
                for i in range(4):
                    r = TM+4*j+i
                    e(f"v_add_u32 v4, {8*j+i}, v14")
                    e("v_cmp_gt_u32 vcc, v4, v8" if t == 0 else "v_cmp_le_u32 vcc, v4, v8")
                    e("s_nop 1")
                    e(f"v_cndmask_b32 v{r}, v15, v{r}, vcc")
        for i in range(8):
            e(f"v_cvt_pk_bf16_f32 v{SP+8*t+i}, v{TM+2*i}, v{TM+2*i+1}")
            e(f"v_max3_f32 v3, v3, v{TM+2*i}, v{TM+2*i+1}")
        e(f"s_branch K2_DN{t}")
        lab(f"K2_SK{t}")
        for i in range(8): e(f"v_mov_b32 v{SP+8*t+i}, 0xf149f149")
        lab(f"K2_DN{t}")
    for t in range(9):
        e(f"s_cmp_lt_i32 s35, {t+1}")
        e(f"s_cbranch_scc0 K2_LV{t}")
        e(f"s_mov_b32 s40, {t*1024}")
        for cc in range(2):
            e(f"buffer_load_dwordx2 {vr(VF+8*t+4*cc,2)}, v13, s[28:31], s40 offen offset:{cc*32}")
            e(f"buffer_load_dwordx2 {vr(VF+8*t+4*cc+2,2)}, v13, s[28:31], s40 offen offset:{cc*32+16}")
        lab(f"K2_LV{t}")
    rb("v3", "v3")
    e("ds_bpermute_b32 v4, v10, v3")
    e("s_waitcnt lgkmcnt(0)")
    e("v_max_f32 v3, v3, v4")
    e("v_mov_b32 v5, 0x3eb8aa3b")
    e("v_mul_f32 v3, v5, v3")
    e("v_mov_b32 v6, 0"); e("v_mov_b32 v7, 0")
    T2 = 12
    for r in range(0, 72, 2):
        for u in range(2):
            e(f"v_lshlrev_b32 v{T2+2*u}, 16, v{SP+r+u}")
            e(f"v_and_b32 v{T2+2*u+1}, 0xffff0000, v{SP+r+u}")
        for u in range(2):
            e(f"v_fma_f32 v{T2+2*u}, v{T2+2*u}, v5, -v3")
            e(f"v_fma_f32 v{T2+2*u+1}, v{T2+2*u+1}, v5, -v3")
        for u in range(2):
            e(f"v_exp_f32 v{T2+2*u}, v{T2+2*u}")
            e(f"v_exp_f32 v{T2+2*u+1}, v{T2+2*u+1}")
        for u in range(2):
            e(f"v_add_f32 v6, v6, v{T2+2*u}")
            e(f"v_add_f32 v7, v7, v{T2+2*u+1}")
            e(f"v_cvt_pk_bf16_f32 v{SP+r+u}, v{T2+2*u}, v{T2+2*u+1}")
    e("v_add_f32 v6, v6, v7")
    e("ds_bpermute_b32 v4, v10, v6")
    e("v_add_u32 v17, s3, v8")
    e("v_lshlrev_b32 v17, 10, v17")
    e("v_lshl_add_u32 v17, v9, 3, v17")
    e("s_lshl_b32 s38, s36, 5")
    e(f"s_add_u32 s38, s38, {WS_O}")
    e("v_add_u32 v17, s38, v17")
    e("s_waitcnt vmcnt(0) lgkmcnt(0)")
    e("v_add_f32 v6, v6, v4")
    e("v_rcp_f32 v16, v6")
    for i in range(16): e(f"v_mov_b32 v{AC+i}, 0")
    e("s_nop 1")
    for t in range(9):
        e(f"s_cmp_lt_i32 s35, {t+1}")
        e(f"s_cbranch_scc0 K2_SV{t}")
        for cc in range(2):
            e(f"v_mfma_f32_32x32x16_bf16 {vr(AC,16)}, {vr(VF+8*t+4*cc,4)}, {vr(SP+8*t+4*cc,4)}, {vr(AC,16)}")
        lab(f"K2_SV{t}")
    e("s_nop 7"); e("s_nop 7")
    for i in range(8): e(f"v_mul_f32 v{AC+i}, v{AC+i}, v16")
    for i in range(4): e(f"v_cvt_pk_bf16_f32 v{AC+i}, v{AC+2*i}, v{AC+2*i+1}")
    e(f"buffer_store_dwordx2 {vr(AC,2)}, v17, s[28:31], 0 offen")
    e(f"buffer_store_dwordx2 {vr(AC+2,2)}, v17, s[28:31], 0 offen offset:16")
    e("s_endpgm")
    lab("K2_CONV")
    srd(36, 16, 512*2048*2)
    e("s_lshl_b32 s3, s2, 1")
    e("s_lshl_b32 s41, s3, 1")
    e("s_load_dword s48, s[18:19], s41")
    e("s_lshl_b32 s43, s3, 12")
    e("v_lshlrev_b32 v5, 4, v0")
    e("buffer_load_dwordx4 v[40:43], v5, s[36:39], s43 offen")
    e(f"s_add_u32 s44, s43, {WS_KV}")
    e("buffer_load_dwordx4 v[48:51], v5, s[28:31], s44 offen")
    e("s_add_u32 s43, s43, 4096")
    e("buffer_load_dwordx4 v[44:47], v5, s[36:39], s43 offen")
    e("s_add_u32 s44, s44, 4096")
    e("buffer_load_dwordx4 v[52:55], v5, s[28:31], s44 offen")
    for i in range(4): e(f"v_mov_b32 v{56+i}, 0")
    e("v_cmp_gt_u32 vcc, 128, v0")
    e("s_and_saveexec_b64 s[50:51], vcc")
    e(f"ds_write_b128 v5, v[56:59] offset:{HCB}")
    e(f"ds_write_b128 v5, v[56:59] offset:{CHB+HCB}")
    e("s_mov_b64 exec, s[50:51]")
    e("v_cmp_gt_u32 vcc, 32, v0")
    e("s_and_saveexec_b64 s[50:51], vcc")
    e("v_lshrrev_b32 v6, 2, v0")
    e("v_and_b32 v7, 3, v0")
    e("v_lshrrev_b32 v8, 2, v6")
    e("v_and_b32 v9, 3, v6")
    e(f"v_mul_u32_u24 v8, {CHB}, v8")
    e(f"v_mul_u32_u24 v9, {CPB}, v9")
    e("v_add_u32 v8, v8, v9")
    e("v_lshl_add_u32 v8, v7, 4, v8")
    e("ds_write_b128 v8, v[56:59]")
    e("s_mov_b64 exec, s[50:51]")
    e("s_waitcnt lgkmcnt(0)")
    e("s_barrier")
    e("s_waitcnt vmcnt(0)")
    e(f"ds_write_b128 v5, v[48:51] offset:{HCB+XZ}")
    e(f"ds_write_b128 v5, v[52:55] offset:{CHB+HCB+XZ}")
    for ch in range(2):
        hb = 40+4*ch; base = ch*CHB
        e(f"ds_write_b128 v5, {vr(hb,4)} offset:{base+64}")
        for i in range(4):
            e(f"ds_write_b32 v5, v{hb+i} offset:{base+2*CPB+64-4+4*i}")
        for p in (1, 3):
            for i in range(4):
                e(f"ds_write_b16 v5, v{hb+i} offset:{base+p*CPB+64-2*p+4*i}")
                e(f"ds_write_b16_d16_hi v5, v{hb+i} offset:{base+p*CPB+64-2*p+4*i+2}")
    e("s_waitcnt lgkmcnt(0)")
    e("s_barrier")
    e("s_lshr_b32 s61, s32, 1")
    e("s_and_b32 s62, s32, 1")
    e(f"s_mul_i32 s63, s61, {CHB}")
    e("v_and_b32 v8, 31, v1")
    e("v_lshrrev_b32 v9, 5, v1")
    e("v_add_u32 v10, 1, v8")
    e("v_and_b32 v10, 3, v10")
    e("v_add_u32 v11, 25, v8")
    e("v_sub_u32 v11, v11, v10")
    e("v_lshlrev_b32 v13, 3, v9")
    e("v_sub_u32 v11, v11, v13")
    e(f"v_mul_u32_u24 v12, {CPB}, v10")
    e("v_lshl_add_u32 v12, v11, 1, v12")
    e("v_add_u32 v12, s63, v12")
    e("v_subrev_u32 v12, 32, v12")
    e("s_lshl_b32 s64, s62, 5")
    e("v_add_u32 v13, s64, v8")
    e("v_lshlrev_b32 v13, 2, v13")
    e("v_add_u32 v13, v13, v9")
    e("v_lshlrev_b32 v13, 4, v13")
    e(f"s_add_u32 s65, s63, {HCB+XZ}")
    e("v_add_u32 v13, s65, v13")
    for i in range(16): e(f"v_mov_b32 v{32+i}, 0")
    e("s_lshl_b32 s66, s62, 5")
    e("s_add_u32 s66, s66, 32")
    e("s_mov_b32 s67, 0")
    def rdc(b_):
        e(f"ds_read_b64 v[{b_}:{b_+1}], v12 offset:32")
        e(f"ds_read_b64 v[{b_+2}:{b_+3}], v12 offset:40")
        e(f"ds_read_b128 v[{b_+4}:{b_+7}], v13")
        e(f"ds_read_b64 v[{b_+8}:{b_+9}], v12")
        e(f"ds_read_b64 v[{b_+10}:{b_+11}], v12 offset:8")
        e(f"ds_read_b128 v[{b_+12}:{b_+15}], v13 offset:32")
        e("v_add_u32 v12, 64, v12")
        e("v_max_i32 v13, s65, v13") if False else None
        e("v_subrev_u32 v13, 64, v13")
    rdc(16); rdc(64)
    lab("K2_CONV_LOOP")
    for b_ in (16, 64):
        e("s_waitcnt lgkmcnt(6)")
        e(f"v_mfma_f32_32x32x16_bf16 v[32:47], v[{b_}:{b_+3}], v[{b_+4}:{b_+7}], v[32:47]")
        e(f"v_mfma_f32_32x32x16_bf16 v[32:47], v[{b_+8}:{b_+11}], v[{b_+12}:{b_+15}], v[32:47]")
        rdc(b_)
    e("s_add_u32 s67, s67, 2")
    e("s_cmp_lt_u32 s67, s66")
    e("s_cbranch_scc1 K2_CONV_LOOP")
    e("s_waitcnt lgkmcnt(0)")
    e("s_nop 7"); e("s_nop 7")
    e("s_lshl_b32 s68, s61, 4")
    e("s_lshr_b32 s68, s48, s68")
    e("s_lshl_b32 s68, s68, 16")
    e("v_add_u32 v13, s64, v8")
    e("v_lshlrev_b32 v14, 6, v13")
    e("v_add_u32 v14, s65, v14")
    e("v_sub_u32 v15, 1, v9")
    e("v_lshl_add_u32 v14, v15, 3, v14")
    for j in range(4):
        e(f"ds_read_b64 v[{16+2*j}:{17+2*j}], v14 offset:{16*j}")
    e("s_add_u32 s69, s3, s61")
    e("s_lshl_b32 s69, s69, 12")
    e(f"s_add_u32 s69, s69, {WS_YT}")
    e("v_lshlrev_b32 v15, 6, v13")
    e("v_lshl_add_u32 v15, v9, 3, v15")
    e("v_add_u32 v15, s69, v15")
    e("s_waitcnt lgkmcnt(0)")
    for j in range(4):
        a, b = 16+2*j, 17+2*j
        e(f"v_and_b32 v48, 0xffff0000, v{b}"); e(f"v_lshlrev_b32 v49, 16, v{b}")
        e(f"v_and_b32 v50, 0xffff0000, v{a}"); e(f"v_lshlrev_b32 v51, 16, v{a}")
        for i in range(4):
            e(f"v_mul_f32 v{48+i}, s68, v{48+i}"); rb(f"v{48+i}", f"v{48+i}")
            rb(f"v{52+i}", f"v{32+4*j+i}")
            e(f"v_add_f32 v{48+i}, v{48+i}, v{52+i}")
        e(f"v_cvt_pk_bf16_f32 v{56+2*(j&1)}, v48, v49")
        e(f"v_cvt_pk_bf16_f32 v{57+2*(j&1)}, v50, v51")
        e(f"buffer_store_dwordx2 {vr(56+2*(j&1),2)}, v15, s[28:31], 0 offen offset:{16*j}")
    lab("K2_END")
    e("s_endpgm")
```

```python
from common import *
K3_LDS = 128*1040
def k3(L):
    e, lab, vr, srd, rb = mk(L)
    lab("k3_kernel")
    e("s_cmp_ge_u32 s2, 256")
    e("s_cbranch_scc1 K3_END")
    e("s_load_dwordx2 s[4:5], s[0:1], 0")
    e("s_load_dwordx2 s[10:11], s[0:1], 80")
    e("s_load_dwordx2 s[12:13], s[0:1], 96")
    e("v_and_b32 v1, 63, v0")
    e("v_lshrrev_b32 v2, 6, v0")
    e("s_nop 1")
    e("v_readfirstlane_b32 s32, v2")
    e("s_lshr_b32 s6, s2, 3")
    e("s_lshl_b32 s6, s6, 6")
    e("s_lshr_b32 s37, s32, 1")
    e("s_lshl_b32 s3, s37, 5")
    e("s_add_u32 s3, s3, s6")
    e("s_and_b32 s33, s2, 7")
    e("s_lshl_b32 s33, s33, 1")
    e("s_and_b32 s34, s32, 1")
    e("s_add_u32 s33, s33, s34")
    e("s_lshl_b32 s36, s33, 5")
    e("s_waitcnt lgkmcnt(0)")
    srd(16, 4, 2048*512*2); srd(24, 10, 2048*512*2); srd(28, 12, 0x10000000)
    e("v_and_b32 v8, 31, v1")
    e("v_lshrrev_b32 v9, 5, v1")
    e("s_and_b32 s43, s2, 7")
    e("s_lshl_b32 s43, s43, 16")
    e(f"s_add_u32 s43, s43, {WS_WOT}")
    e("s_lshl_b32 s44, s6, 10")
    e(f"s_add_u32 s44, s44, {WS_O}")
    e("v_lshlrev_b32 v11, 4, v0")
    e("v_lshlrev_b32 v12, 4, v1")
    e("v_mul_u32_u24 v17, 1040, v2")
    e("v_add_u32 v12, v12, v17")
    for i in range(32):
        e(f"s_add_u32 s45, {'s43' if i<16 else 's44'}, {(i%16)*4096}")
        e(f"buffer_load_dwordx4 {vr(64+4*i,4)}, v11, s[28:31], s45 offen")
    e("v_add_u32 v13, s3, v8")
    e("v_lshlrev_b32 v14, 2, v13")
    e(f"v_add_u32 v14, {WS_G}, v14")
    e("v_lshlrev_b32 v13, 10, v13")
    e("v_lshl_add_u32 v13, v9, 3, v13")
    e("s_lshl_b32 s38, s36, 1")
    e("v_add_u32 v13, s38, v13")
    e("v_lshl_add_u32 v15, v9, 2, s36")
    e("v_lshlrev_b32 v15, 12, v15")
    e("v_add_u32 v3, s3, v8")
    e("v_lshl_add_u32 v15, v3, 1, v15")
    e(f"v_add_u32 v15, {WS_YT}, v15")
    XB, YB = 192, 200
    e("buffer_load_dword v4, v14, s[28:31], 0 offen")
    for j in range(4):
        e(f"buffer_load_dwordx2 {vr(XB+2*j,2)}, v13, s[16:19], 0 offen offset:{16*j}")
        for i in range(4):
            e(f"s_mov_b32 s41, {(8*j+i)*4096}")
            e(f"buffer_load_ushort v{YB+4*j+i}, v15, s[28:31], s41 offen")
    for i in range(32):
        e(f"s_waitcnt vmcnt({31-i+21})")
        if i % 12 == 0 and i: e(f"v_add_u32 v12, {12*4160}, v12")
        e(f"ds_write_b128 v12, {vr(64+4*i,4)} offset:{(i%12)*4160}")
    e("s_lshl_b32 s45, s34, 5")
    e("v_add_u32 v11, s45, v8")
    e("v_mul_u32_u24 v11, 1040, v11")
    e("v_lshl_add_u32 v11, v9, 4, v11")
    e("s_lshl_b32 s45, s37, 5")
    e("s_add_u32 s45, s45, 64")
    e("v_add_u32 v12, s45, v8")
    e("v_mul_u32_u24 v12, 1040, v12")
    e("v_lshl_add_u32 v12, v9, 4, v12")
    for i in range(16): e(f"v_mov_b32 v{32+i}, 0")
    e("s_waitcnt lgkmcnt(0)")
    e("s_barrier")
    for hf in range(2):
        for kk in range(16):
            e(f"ds_read_b128 {vr(64+8*kk,4)}, v11 offset:{hf*512+kk*32}")
            e(f"ds_read_b128 {vr(68+8*kk,4)}, v12 offset:{hf*512+kk*32}")
        for kk in range(16):
            e(f"s_waitcnt lgkmcnt({min(15,30-2*kk)})")
            e(f"v_mfma_f32_32x32x16_bf16 v[32:47], {vr(64+8*kk,4)}, {vr(68+8*kk,4)}, v[32:47]")
    e("s_nop 7"); e("s_nop 7")
    e("s_waitcnt vmcnt(0)")
    e("v_sub_f32 v5, 1.0, v4"); rb("v5","v5")
    for j in range(4):
        e(f"v_lshlrev_b32 v24, 16, v{XB+2*j}"); e(f"v_and_b32 v25, 0xffff0000, v{XB+2*j}")
        e(f"v_lshlrev_b32 v26, 16, v{XB+2*j+1}"); e(f"v_and_b32 v27, 0xffff0000, v{XB+2*j+1}")
        for i in range(4):
            e(f"v_lshlrev_b32 v{20+i}, 16, v{YB+4*j+i}")
            e(f"v_mul_f32 v{20+i}, v{20+i}, v{24+i}"); rb(f"v{20+i}", f"v{20+i}")
            e(f"v_mul_f32 v{20+i}, v4, v{20+i}"); rb(f"v{20+i}", f"v{20+i}")
            rb(f"v{24+i}", f"v{32+4*j+i}")
            e(f"v_mul_f32 v{24+i}, v5, v{24+i}"); rb(f"v{24+i}", f"v{24+i}")
            e(f"v_add_f32 v{20+i}, v{20+i}, v{24+i}")
        e(f"v_cvt_pk_bf16_f32 v{28+2*(j&1)}, v20, v21")
        e(f"v_cvt_pk_bf16_f32 v{29+2*(j&1)}, v22, v23")
        e(f"buffer_store_dwordx2 {vr(28+2*(j&1),2)}, v13, s[24:27], 0 offen offset:{16*j}")
    lab("K3_END")
    e("s_endpgm")
```
